```python
import torch

def _softmax(x, axis=-1):
    return torch.softmax(x, dim=axis)

def _gelu(x):
    return torch.nn.functional.gelu(x, approximate='tanh')

def _silu(x):
    return torch.nn.functional.silu(x)

def _sigmoid(x):
    return torch.sigmoid(x)

def _layernorm(x, axis=-1, eps=1e-05):
    m = x.mean(dim=axis, keepdim=True)
    v = x.var(dim=axis, keepdim=True, unbiased=False)
    return (x - m) / torch.sqrt(v + eps)

def _scatter_add(tgt, idx, src, axis=0):
    return tgt.clone().index_add_(axis, idx, src)

def _segment_sum(src, seg, n):
    out = torch.zeros((n,) + src.shape[1:], dtype=src.dtype)
    return out.index_add_(0, seg, src)

def _pad(x, pw):
    flat = tuple((v for pair in reversed(pw) for v in pair))
    return torch.nn.functional.pad(x, flat)
kernel_name = 'parallel_sum__memory_aug_recurrent_mem_tr__dense_activation_gelu__prompt'

def setup_inputs():

    _w = lambda a: (lambda t: t.to(torch.bfloat16) if t.is_floating_point() else t)(torch.as_tensor(a))

    def _A_setup():
        B, S, Dm = (1, 2048, 640)
        H, Dh = (32, 128)
        M, seg = (8, 32)
        seg = min(seg, S)
        S = S // seg * seg
        return {'x': _w((lambda *s: torch.randn(*s, dtype=torch.bfloat16) * 0.05)(B, S, Dm)), 'mem0': _w((lambda *s: torch.randn(*s, dtype=torch.bfloat16) * 0.2)(B, M, Dm)), 'Wq': _w((lambda *s: torch.randn(*s, dtype=torch.bfloat16) * 1.6)(Dm, H, Dh) * Dm ** (-0.5)), 'Wk': _w((lambda *s: torch.randn(*s, dtype=torch.bfloat16) * 1.6)(Dm, H, Dh) * Dm ** (-0.5)), 'Wv': _w((lambda *s: torch.randn(*s, dtype=torch.bfloat16) * 0.2)(Dm, H, Dh) * Dm ** (-0.5)), 'Wo': _w((lambda *s: torch.randn(*s, dtype=torch.bfloat16) * 0.2)(H, Dh, Dm) * (H * Dh) ** (-0.5)), 'seg_len': seg}
    _A_in = _A_setup()

    def _B_setup():
        B, S, D, F = (1, 2048, 640, 1728)
        return {'x': _w((lambda *s: torch.randn(*s, dtype=torch.bfloat16) * 0.05)(B, S, D)), 'w1': _w((lambda *s: torch.randn(*s, dtype=torch.bfloat16) * 0.4)(D, F) * D ** (-0.5)), 'b1': _w((lambda *s: torch.randn(*s, dtype=torch.bfloat16) * 12.8)(F) * 0.01), 'w2': _w((lambda *s: torch.randn(*s, dtype=torch.bfloat16) * 0.2)(F, D) * F ** (-0.5)), 'b2': _w((lambda *s: torch.randn(*s, dtype=torch.bfloat16) * 1.6)(D) * 0.01)}
    _B_in = _B_setup()
    return {'A_x': _A_in['x'], 'A_mem0': _A_in['mem0'], 'A_Wq': _A_in['Wq'], 'A_Wk': _A_in['Wk'], 'A_Wv': _A_in['Wv'], 'A_Wo': _A_in['Wo'], 'A_seg_len': _A_in['seg_len'], 'B_x': _B_in['x'], 'B_w1': _B_in['w1'], 'B_b1': _B_in['b1'], 'B_w2': _B_in['w2'], 'B_b2': _B_in['b2']}

def reference(A_x, A_mem0, A_Wq, A_Wk, A_Wv, A_Wo, A_seg_len, B_x, B_w1, B_b1, B_w2, B_b2):

    def _A_ref(x, mem0, Wq, Wk, Wv, Wo, seg_len):
        B, S, Dm = x.shape
        H, Dh = (Wq.shape[1], Wq.shape[2])
        M = mem0.shape[1]
        scale = Dh ** (-0.5)
        n_seg = S // seg_len
        L = M + seg_len
        idx = torch.arange(L)
        mask = (idx[:, None] < M) | (idx[:, None] >= idx[None, :])
        mem = mem0
        outs = []
        for s in range(n_seg):
            xs = x[:, s * seg_len:(s + 1) * seg_len, :].clone()
            h = torch.concatenate([mem, xs], axis=1)
            q = torch.einsum('btd,dhe->bhte', h, Wq)
            k = torch.einsum('btd,dhe->bhte', h, Wk)
            v = torch.einsum('btd,dhe->bhte', h, Wv)
            scores = torch.einsum('bhqe,bhke->bhqk', q, k) * scale
            scores = torch.where(mask[None, None], scores, -1000000000.0)
            p = _softmax(scores, axis=-1)
            o = torch.einsum('bhqk,bhke->bhqe', p, v)
            o = torch.einsum('bhte,hed->btd', o, Wo)
            mem = o[:, :M, :].clone()
            outs.append(o[:, M:, :])
        return torch.concatenate(outs, axis=1)

    def _B_ref(x, w1, b1, w2, b2):
        h = torch.einsum('bsd,df->bsf', x, w1) + b1
        h = _gelu(h)
        return torch.einsum('bsf,fd->bsd', h, w2) + b2
    x = A_x
    xn = _layernorm(x, axis=-1)
    return x + _A_ref(xn, A_mem0, A_Wq, A_Wk, A_Wv, A_Wo, A_seg_len) + _B_ref(xn, B_w1, B_b1, B_w2, B_b2)
```

```python
from emit import *
import struct

WS_P = 0x0000000
GRP = 0x80000
PSLOT = 0x28000
MLOC = 0x60000
WS_FLAG = 0x0100000
WS_MR = 0x0200000
WS_XN = 0x0400000
WS_H = 0x0800000
WS_KVM = 0x1000000
WS_Q = 0x2000000
WS_K = 0x3000000
WS_V = 0x4000000
WS_O = 0x5000000
WS_DBG = 0x6000000
WS_BYTES = 268435456

MEMA = 0
KX = 10240
QT = 18432
KT = 20480
OX = 22528
WBASE = 24576
LDS_BYTES = 163840

vIdx, vL16, vA, vL16b, vL16c, vTr, vL8, vR1, vPst, vR2 = range(10)
vT0, vT1 = 10, 11
AR = 12
S0, S1, S2, ACCV = 28, 32, 36, 40
ACCQ, ACCK = S0, S1
OP0, OP1 = 44, 60
KVP = 76
VX = 80
SLOT = dict(L=44, X=52, Y=60, a=44, b=52, c=60, d=68, m=44, n=66)
RST = 68
VW = 88

sW = 12
sHead, sWave, sStep = 16, 17, 18
sP, sM, sMold, sRed = 19, 20, 21, 22
sGrp = 23
sKx, sVx, sKvm, sMr = 24, 25, 26, 27
sC, sNegC = 28, 29
sLo = 30
sTmp = 32
sOnes, sHalf = 40, 42
sMp, sRedOld, sMloc0 = 44, 45, 46
sRedOld1, sRedX, sRedX1 = 55, 56, 58
sReady = 59
sPar = 47
sPp = 52
sSpin = 57
sStamp = 64

SCALE_LOG2E = 128 ** -0.5 * 1.4426950408889634


def f32bits(x):
    return struct.unpack('<I', struct.pack('<f', x))[0]


NV1 = 6
QK1 = [(m, f) for f in range(10) for m in ('qkv' if f < NV1 else 'qk')]
VA = [('v', f) for f in (6, 7, 8, 9)]
QK2 = [(m, f) for f in range(10, 17) for m in 'qk'] + [('q', 17), ('q', 18), ('q', 19), ('k', 17), ('k', 18), ('k', 19)]
VB = [('v', f) for f in (16, 17, 18, 19, 10, 11, 12, 13)]
VC = [('v', f) for f in (14, 15)]
FIRST = QK1 + VA + QK2


def placement():
    place = {}
    lds = [(FIRST[i], s) for i, s in ((2, 'L'), (5, 'X'), (8, 'Y'), (12, 'L'), (16, 'X'), (20, 'Y'), (25, 'L'), (29, 'X'), (33, 'Y'), (37, 'L'), (40, 'X'))]
    lds += [(('o', n), s) for n, s in ((0, 'a'), (1, 'b'), (2, 'c'), (3, 'd'))]
    lds += [(('p', 0), None), (('p', 1), None)]
    for i, (k, s) in enumerate(lds): place[k] = ('l', i, s)
    assert len(lds) == 17
    keys = [(m, f) for m in 'qkv' for f in range(20)] + [('o', n) for n in range(8)] + [('p', 0), ('p', 1)]
    na = nv = 0
    for k in keys:
        if k in place: continue
        if na < 32: place[k] = ('a', 8 * na); na += 1
        else: place[k] = ('v', VW + 8 * nv); nv += 1
    assert nv == 21, nv
    return keys, place


KEYS, PLACE = placement()
NSET = len(KEYS)


def wop(key):
    p = PLACE[key]
    if p[0] == 'a': return ar(p[1], 8)
    if p[0] == 'v': return vr(p[1], 8)
    return vr(SLOT[p[2]], 8)


def lds_addr(off):
    return (vL16, vL16b, vL16c)[off >> 16], off & 0xffff


def lds_slot_of(i):
    return (NSET - 17 + i) % 17


SKIP = ''


def fetch_to(e, setidx, strip, b):
    if 'l' in SKIP: return
    for hf in range(2):
        r, o = lds_addr(WBASE + lds_slot_of(setidx) * 8192 + strip * 2048 + hf * 1024)
        e('ds_read_b128 %s, v%d offset:%d' % (vr(b + 4 * hf, 4), r, o))


def fetch(e, key, w):
    p = PLACE[key]
    fetch_to(e, p[1], w, SLOT[p[2]])


def next_on_slot(order, key):
    s = PLACE[key][2]
    seen = False
    for k in order:
        if k == key: seen = True; continue
        if seen and PLACE[k][0] == 'l' and PLACE[k][2] == s: return k
    return None


def spin_guard(e, lab_fail):
    e('s_add_u32 s%d, s%d, 1' % (sSpin, sSpin))
    e('s_cmp_gt_u32 s%d, 0x400000' % sSpin)
    e('s_cbranch_scc1 %s' % lab_fail)


LCH = {0: [0], 1: [1], 2: [2], 3: [3, 4]}
RCH = {0: [0], 1: [1], 2: [2, 4], 3: [3]}


def setup_common(e, w):
    e('v_and_b32 v10, 63, v0')
    e('v_lshlrev_b32 v%d, 4, v10' % vL16)
    e('v_add_u32 v%d, 0x10000, v%d' % (vL16b, vL16))
    e('v_add_u32 v%d, 0x20000, v%d' % (vL16c, vL16))
    e('v_lshlrev_b32 v%d, 3, v10' % vL8)
    e('v_lshrrev_b32 v11, 4, v10\nv_and_b32 v12, 15, v10\nv_and_b32 v13, 7, v10')
    e('v_lshlrev_b32 v14, 7, v11\nv_lshl_add_u32 v%d, v13, 4, v14' % vA)
    e('v_and_b32 v14, 1, v12\nv_lshlrev_b32 v14, 7, v14\nv_lshrrev_b32 v15, 2, v12\nv_lshl_add_u32 v15, v11, 2, v15\nv_lshl_add_u32 v%d, v15, 3, v14' % vTr)
    e('v_lshrrev_b32 v14, 1, v11\nv_lshlrev_b32 v14, 4, v14\nv_and_b32 v15, 1, v11\nv_lshl_add_u32 v14, v15, 3, v14')
    e('v_lshrrev_b32 v15, 2, v12\nv_lshlrev_b32 v15, 12, v15\nv_and_b32 v16, 3, v12\nv_lshl_add_u32 v15, v16, 5, v15\nv_add_u32 v15, v15, v14')
    e('s_lshl_b32 s%d, s%d, 7\nv_add_u32 v%d, s%d, v15' % (sTmp, sHead, vPst, sTmp))
    e('v_mov_b32 v17, 0x7ffffff0')
    if w == 0:
        e('v_and_b32 v15, 1, v11\nv_lshlrev_b32 v15, 3, v15\nv_lshrrev_b32 v16, 1, v11\nv_lshl_add_u32 v15, v16, 2, v15\nv_lshl_add_u32 v15, v13, 4, v15')
        e('v_add_u32 v15, s%d, v15' % sTmp)
        e('v_cmp_gt_u32 vcc, 8, v12\nv_cndmask_b32 v%d, v17, v15, vcc' % vR2)
        e('v_mov_b32 v%d, v%d' % (vR1, vL16))
    if w in (1, 2):
        e('v_lshrrev_b32 v15, 1, v10\nv_lshlrev_b32 v15, 7, v15\nv_and_b32 v16, 1, v10\nv_lshl_add_u32 v%d, v16, 4, v15' % vR1)
    if w == 1:
        e('s_lshr_b32 s%d, s%d, 2\ns_lshl_b32 s%d, s%d, 7\ns_and_b32 s%d, s%d, 3\ns_lshl_b32 s%d, s%d, 2\ns_add_u32 s%d, s%d, s%d\ns_add_u32 s%d, s%d, 4096'
          % (sTmp, sHead, sTmp, sTmp, sTmp + 1, sHead, sTmp + 1, sTmp + 1, sTmp, sTmp, sTmp + 1, sTmp, sTmp))
        e('v_add_u32 v15, s%d, v%d\nv_cmp_gt_u32 vcc, 8, v10\nv_cndmask_b32 v%d, v17, v15, vcc' % (sTmp, vL16, vR2))
    if w == 2:
        e('v_lshrrev_b32 v15, 3, v10\nv_lshlrev_b32 v15, 7, v15\nv_and_b32 v16, 1, v10\nv_lshl_add_u32 v15, v16, 6, v15\nv_bfe_u32 v16, v10, 1, 2\nv_lshl_add_u32 v%d, v16, 2, v15' % vR2)
    if w == 3:
        e('v_lshlrev_b32 v%d, 7, v10\nv_mov_b32 v%d, 0' % (vR2, vR1))
    e('v_mov_b32 v15, 0x8888\nv_mov_b32 v16, 0xdddd\nv_cmp_gt_u32 vcc, 8, v12\nv_cndmask_b32 v%d, v16, v15, vcc' % vIdx)
    e('s_mov_b32 s%d, 0x%x\ns_mov_b32 s%d, 0x%x' % (sC, f32bits(SCALE_LOG2E), sNegC, f32bits(-SCALE_LOG2E)))
    e('s_mov_b32 s%d, -1\ns_mov_b32 s%d, 0' % (sLo, sLo + 1))
    e('s_mov_b32 s%d, 0x3f803f80\ns_mov_b32 s%d, 0x3f803f80\ns_mov_b32 s%d, 0x3f003f00\ns_mov_b32 s%d, 0x3f003f00' % (sOnes, sOnes + 1, sHalf, sHalf + 1))
    e('s_mov_b32 s%d, 0\ns_mov_b32 s%d, 0' % (sSpin, sStep))
    e('s_mul_i32 s%d, s%d, %d\ns_add_u32 s%d, s%d, %d' % (sP, sGrp, GRP, sP, sP, WS_P))
    e('s_add_u32 s%d, s%d, %d\ns_mov_b32 s%d, s%d\ns_add_u32 s%d, s%d, 8192' % (sM, sP, MLOC, sMloc0, sM, sMold, sM))
    e('s_lshl_b32 s%d, s%d, 13' % (sTmp, sHead))
    e('s_add_u32 s%d, s%d, %d' % (sKx, sTmp, WS_K))
    e('s_add_u32 s%d, s%d, %d' % (sVx, sTmp, WS_V + w * 2048))
    e('s_lshl_b32 s%d, s%d, 12\ns_add_u32 s%d, s%d, %d' % (sTmp, sHead, sKvm, sTmp, WS_KVM + w * 1024 - 32 * 4096))
    e('s_mov_b32 s48, s8\ns_mov_b32 s49, s9\ns_cmp_eq_u32 s%d, 0\ns_cselect_b32 s50, s10, 0\ns_mov_b32 s51, 0x20000' % sGrp)
    e('s_add_u32 s%d, s%d, %d' % (sTmp + 1, sP, PSLOT))
    red_off(e, 0, sRedOld, sTmp + 1)
    red_off(e, 0, sRedX, sP)
    e('s_xor_b32 s%d, s%d, s%d' % (sRedX, sRedX, sRedOld))
    red_off(e, 1, sRedOld1, sTmp + 1)
    red_off(e, 1, sRedX1, sP)
    e('s_xor_b32 s%d, s%d, s%d' % (sRedX1, sRedX1, sRedOld1))


def set_remote(e):
    e('s_lshl_b32 s%d, s%d, 20\ns_add_u32 s%d, s%d, %d\ns_add_u32 s%d, s%d, s%d\ns_xor_b32 s%d, s%d, 0x100000\ns_sub_u32 s%d, s%d, 16384' % (sMr, sGrp, sMr, sMr, WS_MR, sMr, sMr, sPar, sMp, sMr, sMp, sMp))


def red_off(e, w, dst, slot_reg):
    if w == 0:
        e('s_lshl_b32 s%d, s%d, 12\ns_add_u32 s%d, s%d, s%d' % (dst, sHead, dst, dst, slot_reg))
    else:
        e('s_lshr_b32 s%d, s%d, 2\ns_add_u32 s%d, s%d, 32\ns_lshl_b32 s%d, s%d, 12\ns_and_b32 s%d, s%d, 3\ns_lshl_b32 s%d, s%d, 5\ns_add_u32 s%d, s%d, s%d\ns_add_u32 s%d, s%d, s%d'
          % (dst, sHead, dst, dst, dst, dst, sTmp + 7, sHead, sTmp + 7, sTmp + 7, dst, dst, sTmp + 7, dst, dst, slot_reg))


def kx_dma(e):
    for i in range(8):
        if i % 4 == 0:
            e('s_mov_b32 m0, %d' % (KX + i * 1024))
            if i: e('s_add_u32 s%d, s%d, 4096' % (sTmp, sKx))
        e('buffer_load_dwordx4 v%d, s[8:11], s%d offen offset:%d sc1 lds' % (vL16, sTmp if i >= 4 else sKx, (i % 4) * 1024), tag='kx')


def prologue(e, ptr, cfg):
    order = [k for k in KEYS if PLACE[k][0] != 'l']
    order += sorted([k for k in KEYS if PLACE[k][0] == 'l'], key=lambda k: PLACE[k][1])
    vG8, vG1, vGp, vX, vY = 24, 25, 26, 28, 40
    sW2k = 65
    e('s_lshl_b32 s%d, s%d, 3\nv_add_u32 v16, s%d, v11' % (sTmp, sWave, sTmp))
    e('v_lshlrev_b32 v14, 4, v12')
    e('v_lshl_add_u32 v%d, v16, 13, v14' % vG8)
    e('v_mul_u32_u24 v15, 1280, v16\nv_add_u32 v%d, v15, v14' % vG1)
    e('v_lshrrev_b32 v16, 3, v12\nv_mul_u32_u24 v16, %d, v16\nv_add_u32 v15, v15, v16\nv_lshl_add_u32 v%d, v13, 4, v15' % (64 * 1280, vGp))
    e('s_lshl_b32 s%d, s%d, 6\ns_add_u32 s%d, s%d, %d' % (sTmp, sWave, sTmp, sTmp, WBASE))
    e('v_lshlrev_b32 v14, 10, v11\nv_lshl_add_u32 v14, v12, 2, v14\nv_add_u32 v%d, s%d, v14' % (vX, sTmp))
    e('v_add_u32 v%d, 0x10000, v%d\nv_add_u32 v%d, 0x20000, v%d' % (vX + 1, vX, vX + 2, vX))
    e('s_lshl_b32 s%d, s%d, 11\ns_add_u32 s%d, s%d, %d' % (sW2k, sWave, sW2k, sW2k, WBASE))
    e('v_add_u32 v%d, s%d, v%d\nv_add_u32 v%d, 0x10000, v%d\nv_add_u32 v%d, 0x20000, v%d' % (vY, sW2k, vL16, vY + 1, vY, vY + 2, vY))
    srd = dict(q=68, k=72, v=76, o=80, p=80)
    for m in 'qkvo':
        b = srd[m]
        e('s_mov_b32 s%d, s%d\ns_mov_b32 s%d, s%d\ns_mov_b32 s%d, %d\ns_mov_b32 s%d, 0x20000' % (b, ptr[m], b + 1, ptr[m] + 1, b + 2, 5242880, b + 3))
    e('s_lshl_b32 s84, s%d, 8\ns_mul_i32 s%d, s%d, 2621440\ns_sub_u32 s85, s84, s%d\ns_add_u32 s85, s85, 2621440\ns_add_u32 s84, s84, s%d' % (sHead, sTmp, sGrp, sTmp, sTmp))
    e('s_mul_i32 s64, s%d, 163840\ns_mul_i32 s%d, s%d, 640\ns_add_u32 s64, s64, s%d' % (sHead, sTmp, sGrp, sTmp))
    nt = ' nt' if cfg.get('nt') else ''

    def dma(i):
        m, x = order[i]
        slot = i % 17
        for j in range(2):
            if m == 'o':
                p, f = divmod(x, 4)
                e('s_add_u32 s%d, s64, %d' % (sTmp, (32 * f + 4 * j) * 1280 + p * 256)); va = vG1
            elif m == 'p':
                e('s_add_u32 s%d, s64, %d' % (sTmp, (32 * x + 4 * j) * 1280 + 512)); va = vGp
            else:
                e('s_add_u32 s%d, s%d, %d' % (sTmp, 84 if x < 10 else 85, (32 * (x % 10) + 4 * j) * 8192)); va = vG8
            e('s_add_u32 m0, s%d, %d' % (sW2k, slot * 8192 + j * 1024))
            e('buffer_load_dwordx4 v%d, s[%d:%d], s%d offen%s lds' % (va, srd[m], srd[m] + 3, sTmp, nt), tag=('w', i))

    for i in range(17): dma(i)
    e('s_mov_b32 s%d, s%d\ns_mov_b32 s%d, s%d\ns_mov_b32 s%d, 10240\ns_mov_b32 s%d, 0x20000' % (sW, ptr['mem'], sW + 1, ptr['mem'] + 1, sW + 2, sW + 3))
    e('v_mul_u32_u24 v14, 1280, v13\nv_lshrrev_b32 v15, 3, v10\nv_lshl_add_u32 v14, v15, 4, v14')
    for i in range(3):
        if i < 2: e('s_add_u32 s%d, s%d, %d' % (sTmp + 1, sWave, 4 * i))
        else: e('s_and_b32 s%d, s%d, 1\ns_add_u32 s%d, s%d, 8' % (sTmp + 1, sWave, sTmp + 1, sTmp + 1))
        e('s_lshl_b32 s%d, s%d, 10\nv_add_u32 v%d, s%d, v%d' % (sTmp + 2, sTmp + 1, 56 + i, sTmp + 2, vL16))
        e('s_mul_i32 s%d, s%d, 5\ns_add_u32 s%d, s%d, s%d\ns_cmp_ge_u32 s%d, 10\ns_cselect_b32 s%d, 10, 0\ns_sub_u32 s%d, s%d, s%d\ns_lshl_b32 s%d, s%d, 7'
          % (sTmp + 2, sGrp, sTmp + 1, sTmp + 1, sTmp + 2, sTmp + 1, sTmp + 2, sTmp + 1, sTmp + 1, sTmp + 2, sTmp + 1, sTmp + 1))
        e('buffer_load_dwordx4 %s, v14, s[%d:%d], s%d offen' % (vr(OP0 + 4 * i, 4), sW, sW + 3, sTmp + 1))
    sent = 20
    for i in range(4): e('v_mov_b32 v%d, -1' % (sent + i))
    e('s_lshl_b32 s%d, s%d, 14\ns_lshl_b32 s%d, s%d, 12\ns_add_u32 s%d, s%d, s%d\ns_add_u32 s%d, s%d, s%d' % (sTmp, sHead, sTmp + 1, sWave, sTmp, sTmp, sTmp + 1, sTmp, sTmp, sP))
    for i in range(4):
        e('buffer_store_dwordx4 %s, v%d, s[8:11], s%d offen offset:%d sc1' % (vr(sent, 4), vL16, sTmp, i * 1024))
    e('s_lshl_b32 s%d, s%d, 20\ns_lshl_b32 s%d, s%d, 15\ns_add_u32 s%d, s%d, s%d\ns_lshl_b32 s%d, s%d, 13\ns_add_u32 s%d, s%d, s%d\ns_add_u32 s%d, s%d, %d'
      % (sTmp, sGrp, sTmp + 1, sHead, sTmp, sTmp, sTmp + 1, sTmp + 1, sWave, sTmp, sTmp, sTmp + 1, sTmp, sTmp, WS_MR))
    for i in range(8):
        if i == 4: e('s_add_u32 s%d, s%d, 4096' % (sTmp, sTmp))
        e('buffer_store_dwordx4 %s, v%d, s[8:11], s%d offen offset:%d sc1' % (vr(sent, 4), vL16, sTmp, (i % 4) * 1024))
    tmp = 32
    pending = None
    for i in range(len(order) + 1):
        if i < len(order): e.wait_tag(('w', i))
        e.wait(lg=0)
        e('s_barrier')
        if pending is not None:
            p = PLACE[order[pending]]
            if p[0] == 'l':
                for hf in range(2):
                    off = (pending % 17) * 8192 + hf * 1024
                    e('ds_write_b128 v%d, %s offset:%d' % (vY + (off >> 16), vr(tmp + 4 * hf, 4), off & 0xffff))
            if pending + 17 < len(order): dma(pending + 17)
        if i == len(order): break
        p = PLACE[order[i]]
        slot = i % 17
        if p[0] == 'l': assert slot == lds_slot_of(p[1])
        for j in range(0, 8, 2):
            row = slot * 32 + 16 * (j >> 2) + (j & 3)
            dst = (ar(p[1] + j, 2) if p[0] == 'a' else vr((p[1] if p[0] == 'v' else tmp) + j, 2))
            e('ds_read2st64_b32 %s, v%d offset0:%d offset1:%d' % (dst, vX + (row >> 8), row & 255, (row & 255) + 1))
        pending = i
        if i == 20:
            for j in range(3): e('ds_write_b128 v%d, %s offset:%d' % (56 + j, vr(OP0 + 4 * j, 4), MEMA))
    e.wait(vm=0, lg=0)


def stamp(e, cfg, name):
    st = cfg.get('stamp_names')
    if st and name in st:
        i = st.index(name)
        e.raw('    %s s[%d:%d]' % ('s_memrealtime' if cfg.get('real') else 's_memtime', sStamp + 2 * i, sStamp + 2 * i + 1))


class Gaps:
    def __init__(self, e):
        self.e, self.q = e, []

    def add(self, text, tag=None, auto=True):
        for line in text.split('\n'): self.q.append((line, tag, auto))

    def gap(self, nvalu=1, ntot=2):
        n = v = 0
        while self.q and n < ntot:
            line, tag, auto = self.q[0]
            isv = line.startswith('v_')
            if isv and v >= nvalu: break
            self.q.pop(0)
            self.e.auto = auto
            self.e(line, tag=tag)
            self.e.auto = True
            n += 1; v += isv

    def flush(self):
        while self.q: self.gap(99, 99)


def loop(e, w, st, cfg, name, lab_exit, lab_fail):
    global SKIP
    SKIP = cfg.get('skip', '')
    ring = {}
    acc_of = dict(q=ACCQ, k=ACCK, v=ACCV)
    G = Gaps(e)

    def rdA_t(f, slot):
        ring[f] = slot
        return 'ds_read_b128 %s, v%d offset:%d' % (vr(AR + 4 * slot, 4), vA, MEMA + f * 512)

    def rdA(f, slot): e(rdA_t(f, slot))

    def sm(key):
        e('v_smfmac_f32_16x16x64_bf16 %s, %s, %s, v%d' % (vr(acc_of[key[0]], 4), vr(AR + 4 * ring[key[1]], 4), wop(key), vIdx))
        stamp(e, cfg, '%s%d' % key)

    def fetch_t(setidx, strip, b):
        out = []
        if 'l' in SKIP: return out
        for hf in range(2):
            r, o = lds_addr(WBASE + lds_slot_of(setidx) * 8192 + strip * 2048 + hf * 1024)
            out.append('ds_read_b128 %s, v%d offset:%d' % (vr(b + 4 * hf, 4), r, o))
        return out

    def refill(key, order):
        if PLACE[key][0] == 'l':
            nx = next_on_slot(order, key)
            if nx is not None:
                for x in fetch_t(PLACE[nx][1], w, SLOT[PLACE[nx][2]]): G.add(x)

    zero_t = lambda b: 'v_mov_b64 %s, 0\nv_mov_b64 %s, 0' % (vr(b, 2), vr(b + 2, 2))
    zero = lambda b: e(zero_t(b))
    cvt_t = lambda d, a, b: 'v_cvt_pk_bf16_f32 v%d, v%d, v%d' % (d, a, b)
    cvt = lambda d, a, b: e(cvt_t(d, a, b))

    def remote_loads(tag):
        for i, c in enumerate(RCH[w]):
            if c == 4:
                e('s_add_u32 s%d, s%d, 4096' % (sTmp + 1, sMp))
                e('buffer_load_dwordx4 %s, v%d, s[8:11], s%d offen sc1' % (vr(RST + 4 * i, 4), vR1, sTmp + 1), tag=tag)
            else:
                e('buffer_load_dwordx4 %s, v%d, s[8:11], s%d offen offset:%d sc1' % (vr(RST + 4 * i, 4), vL16, sMp, c * 1024), tag=tag)

    def remote_writes():
        out = []
        for i, c in enumerate(RCH[w]):
            if c == 4:
                for j in range(4): out.append('ds_write_b32 v%d, v%d offset:%d' % (vR2, RST + 4 * i + j, MEMA + 5120 + 4096 + 16 * j))
            else:
                out.append('ds_write_b128 v%d, %s offset:%d' % (vL16, vr(RST + 4 * i, 4), MEMA + 5120 + c * 1024))
        return out

    def sentinel(b, n):
        out = ['v_max3_u32 v%d, v%d, v%d, v%d' % (vT0, b, b + 1, b + 2), 'v_max_u32 v%d, v%d, v%d' % (vT0, vT0, b + 3)]
        for i in range(4, 4 * n, 2): out.append('v_max3_u32 v%d, v%d, v%d, v%d' % (vT0, vT0, b + i, b + i + 1))
        out.append('v_cmp_eq_u32 vcc, -1, v%d' % vT0)
        return out

    def wait_x():
        idx = [i for i, (d, t) in enumerate(e.lg) if t == 'x']
        if idx: e.wait(lg=len(e.lg) - 1 - max(idx))

    firstl = [k for k in FIRST if PLACE[k][0] == 'l'][:3]
    zero(ACCQ); zero(ACCK); zero(ACCV)
    for k in firstl: fetch(e, k, w)
    e.wait(lg=0)
    e('s_barrier')
    e('s_branch %s_first' % name)
    e.forget()
    for i, c in enumerate(RCH[w]): e.vm.append((frozenset(regs_of(vr(RST + 4 * i, 4))), 'r'))
    entry = e.snapshot()

    def part1(steady):
        for f in range(4): rdA(f, f)
        att2, chk = cfg.get('att2', -1), cfg.get('chk', 19)
        for n, key in enumerate(QK1):
            sm(key)
            f = key[1]
            lastuse = key[0] == ('v' if f < NV1 else 'k')
            if lastuse and f + 4 < 10: e(rdA_t(f + 4, ring[f]))
            refill(key, FIRST)
            if steady and n == att2:
                e.auto = False
                remote_loads('r')
                e.auto = True
            if steady and n == chk:
                ws, ss = remote_writes(), sentinel(RST, len(RCH[w]))
                while ws or ss:
                    if ws: G.add(ws.pop(0), 'x')
                    if ss: G.add(ss.pop(0))
            G.gap(1, 1 if (lastuse and f + 4 < 10) else 2)
            if steady and n == chk: stamp(e, cfg, 'rland')
        G.flush()
        if steady:
            e('s_cbranch_vccnz %s_rslow' % name)
            e.label(name + '_rok')
            wait_x()
            e('s_barrier')
        stamp(e, cfg, 'a2')

    e.label(name)
    stamp(e, cfg, 'top')
    part1(True)
    e.label(name + '_mid')
    mid_ring = dict(ring)
    G.add('v_mov_b64 %s, -1\nv_mov_b64 %s, -1' % (vr(RST, 2), vr(RST + 2, 2)))
    for i, key in enumerate(VA):
        sm(key)
        rdA(10 + i, ring[key[1]])
        refill(key, FIRST)
        G.gap(1, 1)
    if 'ready' in cfg:
        e('s_cmp_ge_u32 s%d, s%d\ns_cbranch_scc1 %s_wait' % (sStep, sReady, name))
        e.label(name + '_waited')
    window = []
    for u in range(2):
        window.append('buffer_load_dwordx4 %s, v%d, s[8:11], s%d offen offset:%d sc1' % (vr(VX + 4 * u, 4), vL16, sVx, u * 1024))
    if w == 3 and cfg.get('pf', 1): window.append('buffer_load_dword v%d, v%d, s[8:11], s%d offen sc1' % (vR1, vR2, sKx))
    if cfg.get('pub', 1): window.append('buffer_store_dwordx4 %s, v%d, s[48:51], s%d offen sc1' % (vr(KVP, 4), vL16, sKvm))
    window.append('buffer_store_dwordx4 %s, v%d, s[8:11], s%d offen offset:%d%s' % (vr(RST, 4), vL16, sRedOld, w * 1024, st))
    if w == 1: window.append('buffer_store_dwordx4 %s, v%d, s[8:11], s%d offen%s' % (vr(RST, 4), vR1, sRedOld1, st))
    if w < 2: window.append('buffer_store_dword v%d, v%d, s[8:11], s%d offen%s' % (RST, vR2, sMold, st))
    salu = ['s_add_u32 s%d, s%d, %d' % (sPp + p, sP, (4 * p + w) * 16384) for p in range(3 if w < 2 else 2)]
    salu += ['s_xor_b32 s%d, s%d, s%d' % (sRedOld, sRedOld, sRedX)]
    if w == 1: salu += ['s_xor_b32 s%d, s%d, s%d' % (sRedOld1, sRedOld1, sRedX1)]
    for n, key in enumerate(QK2):
        sm(key)
        f = key[1]
        rd = key[0] == 'k' and f + 4 < 20
        if rd: e(rdA_t(f + 4, ring[f]))
        refill(key, FIRST)
        if key[0] == 'q' and window and n < 14: G.add(window.pop(0))
        if n == 0 and 'window' in cfg: cfg['window'](e, w, G)
        if n == 12:
            for kt in range(2): G.add('ds_read_b128 %s, v%d offset:%d' % (vr(OP0 + 8 + 4 * kt, 4), vL16, KX + kt * 1024))
        if n == 13:
            for kt in range(2): G.add('ds_read_b128 %s, v%d offset:%d' % (vr(OP1 + 8 + 4 * kt, 4), vL16, KX + (2 + kt) * 1024))
            for x in salu: G.add(x)
        if n == 18: G.flush(); G.add(cvt_t(S2, ACCQ, ACCQ + 1))
        if n == 19:
            G.add(cvt_t(S2 + 1, ACCQ + 2, ACCQ + 3))
            G.add('ds_write_b64 v%d, %s offset:%d' % (vL8, vr(S2, 2), QT + w * 512), 'x')
        G.gap(1, 1 if rd else 2)
    assert not window
    G.flush()
    stamp(e, cfg, 'qk')
    sm(VB[0]); rdA(VB[4][1], ring[16])
    sm(VB[1]); rdA(VB[5][1], ring[17])
    cvt(KVP, ACCK, ACCK + 1); cvt(KVP + 1, ACCK + 2, ACCK + 3)
    e('ds_write_b64 v%d, %s offset:%d' % (vL8, vr(KVP, 2), KT + w * 512), tag='x')
    sm(VB[2]); rdA(VB[6][1], ring[18])
    e('s_cmp_eq_u32 s%d, 63' % sStep)
    sm(VB[3]); rdA(VB[7][1], ring[19])
    e('s_cbranch_scc1 %s_last' % name)
    last_state = (e.snapshot(), dict(ring))
    sm(VB[4])
    wait_x()
    e('s_barrier')
    stamp(e, cfg, 'b1')
    OPS = [OP0, OP1, AR, OP0]

    def tr_t(j):
        op = OPS[j]
        return ['ds_read_b64_tr_b16 %s, v%d offset:%d' % (vr(reg + 2 * u, 2), vTr, base + j * 512 + u * 256)
                for base, reg in ((QT, op), (KT, op + 4)) for u in range(2)]

    def kx_t(j):
        op = OPS[j]
        return ['ds_read_b128 %s, v%d offset:%d' % (vr(op + 8 + 4 * kt, 4), vL16, KX + (2 * j + kt) * 1024) for kt in range(2)]

    def S(j):
        op = OPS[j]
        for acc, a in ((S0, op + 8), (S1, op + 12), (S2, op + 4)):
            e('v_mfma_f32_16x16x32_bf16 %s, %s, %s, %s' % (vr(acc, 4), vr(a, 4), vr(op, 4), vr(acc, 4) if j else '0'))
            G.gap(2, 2)
        stamp(e, cfg, 'S%d' % j)

    for x in tr_t(0): e(x)
    for x in tr_t(1): G.add(x)
    sm(VB[5]); G.gap(1, 2)
    sm(VB[6]); G.gap(1, 2)
    sm(VB[7])
    for x in tr_t(2) + kx_t(2): G.add(x)
    G.gap(1, 3)
    S(0)
    G.flush()
    for x in tr_t(3) + kx_t(3): G.add(x)
    S(1)
    G.flush()
    ONES, HALF, PX, PM, X0, X1 = 60, 64, 52, 56, 58, 74
    G.add('v_mov_b64 %s, s[%d:%d]' % (vr(ONES, 2), sOnes, sOnes + 1))
    G.add('v_mov_b64 %s, s[%d:%d]' % (vr(ONES + 2, 2), sOnes, sOnes + 1))
    G.add('v_mov_b64 %s, s[%d:%d]' % (vr(HALF, 2), sHalf, sHalf + 1))
    S(2)
    G.flush()
    for i in range(len(VC)): G.add(rdA_t(VC[i][1], i))
    S(3)
    G.flush()
    for key in VC: sm(key)
    e('v_max3_f32 v%d, v%d, v%d, v%d' % (vT0, S0, S0 + 1, S0 + 2))
    e('v_max3_f32 v%d, v%d, v%d, v%d' % (vT1, S0 + 3, S1, S1 + 1))
    e('v_max3_f32 v%d, v%d, v%d, v%d' % (vT0, vT0, S1 + 2, S1 + 3))
    e('v_max3_f32 v%d, v%d, v%d, v%d' % (vT1, vT1, S2, S2 + 1))
    e('v_max3_f32 v%d, v%d, v%d, v%d' % (vT0, vT0, S2 + 2, S2 + 3))
    e('v_max_f32 v%d, v%d, v%d' % (vT0, vT0, vT1))
    e('v_mov_b32 v%d, v%d' % (vT1, vT0))
    cvt(KVP + 2, ACCV, ACCV + 1); cvt(KVP + 3, ACCV + 2, ACCV + 3)
    e('v_permlane32_swap_b32 v%d, v%d' % (vT0, vT1))
    e('v_max_f32 v%d, v%d, v%d' % (vT0, vT0, vT1))
    e('v_mov_b32 v%d, v%d' % (vT1, vT0))
    for i in range(2): e('v_cndmask_b32 v%d, 0, v%d, s[%d:%d]' % (X0 + i, KVP + 2 + i, sLo, sLo + 1))
    e('v_permlane16_swap_b32 v%d, v%d' % (vT0, vT1))
    e('v_max_f32 v%d, v%d, v%d' % (vT0, vT0, vT1))
    e('v_mul_f32 v%d, s%d, v%d' % (vT0, sNegC, vT0))
    stamp(e, cfg, 'max')
    fma = lambda i: e('v_fma_f32 v%d, v%d, s%d, v%d' % (S0 + i, S0 + i, sC, vT0))
    ex = lambda i: e('v_exp_f32 v%d, v%d' % (S0 + i, S0 + i))
    for i in range(8): fma(i)
    for i in range(8): ex(i)
    for i in range(4): cvt(PX + i, S0 + 2 * i, S0 + 2 * i + 1)
    stamp(e, cfg, 'sm')
    D0, D1, LL = S0, S1, AR + 4
    fma(8); fma(9)
    e('v_mfma_f32_16x16x32_bf16 %s, %s, %s, 0' % (vr(LL, 4), vr(ONES, 4), vr(PX, 4)))
    fma(10); fma(11)
    e('v_mfma_f32_16x16x32_bf16 %s, %s, %s, 0' % (vr(D0, 4), vr(VX, 4), vr(PX, 4)))
    ex(8)
    e('v_mfma_f32_16x16x32_bf16 %s, %s, %s, 0' % (vr(D1, 4), vr(VX + 4, 4), vr(PX, 4)))
    ex(9); ex(10); ex(11)
    cvt(PM, S2, S2 + 1)
    cvt(PM + 1, S2 + 2, S2 + 3)
    for i in range(2): e('v_cndmask_b32 v%d, v%d, 0, s[%d:%d]' % (X1 + i, KVP + 2 + i, sLo, sLo + 1))
    e('v_mfma_f32_16x16x16_bf16 %s, %s, %s, %s' % (vr(LL, 4), vr(HALF, 2), vr(PM, 2), vr(LL, 4)))
    zero(ACCV)
    e('v_mfma_f32_16x16x16_bf16 %s, %s, %s, %s' % (vr(D0, 4), vr(X0, 2), vr(PM, 2), vr(D0, 4)))
    zero(S2)
    e('v_mfma_f32_16x16x16_bf16 %s, %s, %s, %s' % (vr(D1, 4), vr(X1, 2), vr(PM, 2), vr(D1, 4)))
    stamp(e, cfg, 'pv')
    e('v_rcp_f32 v%d, v%d' % (vT0, LL))
    fetch(e, ('o', 0), w)
    for i in range(4): e('v_mul_f32 v%d, v%d, v%d' % (D0 + i, D0 + i, vT0))
    for i in range(4):
        e('v_mul_f32 v%d, v%d, v%d' % (D1 + i, D1 + i, vT0))
    for i in range(4): cvt(AR + i, D0 + i, D1 + i)
    e('ds_write_b128 v%d, %s offset:%d' % (vA, vr(AR, 4), OX + w * 512), tag='x')
    stamp(e, cfg, 'ow')
    for n in (1, 2, 3): fetch(e, ('o', n), w)
    zero(S0)
    e.wait(vm=0)
    wait_x()
    e('s_barrier')
    stamp(e, cfg, 'T0')
    for f in range(4): e('ds_read_b128 %s, v%d offset:%d' % (vr(AR + 4 * f, 4), vA, OX + f * 512))
    nr = 3 if w < 2 else 2
    accs = [ACCV, S2, S0]
    side = []
    if w == 3: kx_dma(e)
    for p in range(nr):
        for f in range(4):
            b = (SLOT['abcd'[f]])
            wsrc = wop(('o', 4 * p + f)) if p < 2 else vr(b, 8)
            e('v_smfmac_f32_16x16x64_bf16 %s, %s, %s, v%d' % (vr(accs[p], 4), vr(AR + 4 * f, 4), wsrc, vIdx))
            stamp(e, cfg, 'o%d' % (4 * p + f))
            if p == 0 and w < 2: fetch_to(e, PLACE[('p', f & 1)][1], w + 2 * (f >> 1), b)
            if side and f >= 1: side.pop(0)()
        side = [lambda p=p: cvt(vT0, accs[p], accs[p] + 1), lambda p=p: cvt(vT1, accs[p] + 2, accs[p] + 3),
                lambda p=p: e('buffer_store_dwordx2 %s, v%d, s[8:11], s%d offen%s' % (vr(vT0, 2), vPst, sPp + p, st), tag=('p', p))]
    SEL, RES = 60, 64
    if w < 2:
        e('v_bfe_u32 v%d, v%d, 4, 3' % (RES + 1, vA))
        e('v_and_b32 v%d, 1, v%d\nv_lshlrev_b32 v%d, 4, v%d' % (RES + 2, RES + 1, RES + 2, RES + 2))
        e('v_lshrrev_b32 v%d, 1, v%d' % (RES + 1, RES + 1))
        e('v_mov_b32 v%d, 0x3f80\nv_lshlrev_b32 v%d, v%d, v%d' % (RES, RES + 2, RES + 2, RES))
    for x in side: x()
    stamp(e, cfg, 'stored')
    LST = 68
    if w < 2:
        for i in range(4):
            e('v_cmp_eq_u32 vcc, %d, v%d\nv_cndmask_b32 v%d, 0, v%d, vcc' % (i, RES + 1, SEL + i, RES + 2))
    zero(ACCQ); zero(ACCK); zero(ACCV)
    if w < 2:
        nl = 4 if w == 0 else 1

        def attempt():
            for i in range(nl):
                e('buffer_load_dwordx4 %s, v%d, s[8:11], s%d offen offset:%d sc1' % (vr(OP0 + 4 * i, 4), vR1, sRedOld1 if w else sRedOld, i * 1024))

        def pause(c):
            n = c // 4
            while n > 0:
                k = min(n, 16); e('s_nop %d' % (k - 1)); n -= k

        e.wait_tag(('p', cfg.get('rw', (1, 1))[w]))
        pause(cfg.get('rd', (0, 0))[w])
        stamp(e, cfg, 'redgo')
        depth = cfg.get('ov', (0, 2))[w]
        e.auto = False
        for _ in range(depth):
            attempt()
            pause(cfg.get('ovd', (100, 80))[w])
        e.label(name + '_red')
        attempt()
        for i in range(nl):
            e('s_waitcnt vmcnt(%d)' % (nl - 1 - i + depth * nl))
            e('v_mfma_f32_16x16x32_bf16 %s, %s, %s, %s' % (vr(RES, 4), vr(OP0 + 4 * i, 4), vr(SEL, 4), vr(RES, 4) if i else '0'))
        e.vm = [(frozenset(regs_of(vr(OP0 + 4 * i, 4))), None) for _ in range(depth) for i in range(nl)]
        e.auto = True
        add2 = 'v_add_f32 v%d, v%d, v%d\nv_add_f32 v%d, v%d, v%d' % (RES, RES, RES + 2, RES + 1, RES + 1, RES + 3)
        cp2 = 'v_mov_b64 %s, %s' % (vr(RES + 2, 2), vr(RES, 2))
        sw = lambda k: 'v_permlane%d_swap_b32 v%d, v%d\nv_permlane%d_swap_b32 v%d, v%d' % (k, RES, RES + 2, k, RES + 1, RES + 3)
        if w == 0:
            e(sw(32)); e(add2)
        else:
            e(add2); e(cp2); e(sw(32)); e(add2); e(cp2); e(sw(16)); e(add2)
        e('v_cmp_u_f32 vcc, v%d, v%d' % (RES, RES + 1))
        cvt(RES, RES, RES + 1)
        e('s_cbranch_vccnz %s_redslow' % name)
        e.label(name + '_redok')
        e('buffer_store_dword v%d, v%d, s[8:11], s%d offen%s' % (RES, vR2, sM, st), tag='pub')
        stamp(e, cfg, 'pub')
        if w == 1:
            e('v_lshrrev_b32 v%d, 1, v%d' % (RES + 1, vL8))
            e('s_lshl_b32 s%d, s%d, 7\ns_add_u32 s%d, s%d, 4096\ns_add_u32 s%d, s%d, s%d' % (sTmp, sHead, sTmp, sTmp, sTmp, sTmp, sMr))
    else:
        for k in firstl: fetch(e, k, w)
    e('s_barrier')
    if w == 0:
        e('buffer_store_dword v%d, v%d, s[8:11], s%d offen sc1' % (RES, vR2, sMr))
    if w == 1:
        e('s_mov_b64 exec, 0xff')
        e('buffer_store_dword v%d, v%d, s[8:11], s%d offen sc1' % (RES, RES + 1, sTmp))
        e('s_mov_b64 exec, -1')
    def pause(c):
        n = c // 4
        while n > 0:
            k = min(n, 16); e('s_nop %d' % (k - 1)); n -= k

    if w == 3: e.wait_tag('kx')
    if 'pd' in cfg:
        pause(cfg['pd'])
    else:
        if w < 2: e.wait_tag('pub')
        e('s_barrier')
    stamp(e, cfg, 'pollgo')

    def local_loads():
        for i, c in enumerate(LCH[w]):
            if c == 4: e('s_add_u32 s%d, s%d, 4096' % (sTmp, sM))
            e('buffer_load_dwordx4 %s, v%d, s[8:11], s%d offen offset:%d sc1' % (vr(LST + 4 * i, 4), vL16, sTmp if c == 4 else sM, (c & 3) * 1024))

    local_loads()
    if w < 2:
        for k in firstl: fetch(e, k, w)
    e('s_add_u32 s%d, s%d, 1' % (sStep, sStep))
    e('s_xor_b32 s%d, s%d, %d' % (sP, sP, PSLOT))
    e('s_add_u32 s%d, s%d, %d\ns_add_u32 s%d, s%d, %d' % (sVx, sVx, 32 * 8192 * cfg.get('adv', 1), sKvm, sKvm, 32 * 4096))
    e('s_add_u32 s%d, s%d, %d' % (sKx, sKx, 32 * 8192 * cfg.get('adv', 1)))
    lov, nch = cfg.get('lov', 0), len(LCH[w])
    if lov:
        e.auto = False
        for _ in range(lov - 1):
            pause(cfg.get('lovd', 100)); local_loads()
        pause(cfg.get('lovd', 100))
        e.label(name + '_chk')
        local_loads()
        e('s_waitcnt vmcnt(%d)' % (lov * nch))
        for x in sentinel(LST, nch): e(x)
        e('s_cbranch_vccnz %s_chkslow' % name)
        for i, c in enumerate(LCH[w]):
            e('ds_write_b128 v%d, %s offset:%d' % (vL16, vr(LST + 4 * i, 4), MEMA + c * 1024))
        e.vm = [(frozenset(), None)] * (lov * nch)
        e.auto = True
    else:
        e.label(name + '_chk')
        for i, c in enumerate(LCH[w]):
            e('ds_write_b128 v%d, %s offset:%d' % (vL16, vr(LST + 4 * i, 4), MEMA + c * 1024))
        for x in sentinel(LST, nch): e(x)
        e('s_cbranch_vccnz %s_chkslow' % name)
    stamp(e, cfg, 'staged')
    e('s_sub_u32 s%d, s%d, 8192\ns_cmp_lt_u32 s%d, s%d\ns_cselect_b32 s%d, 24576, 0\ns_add_u32 s%d, s%d, s%d' % (sMold, sM, sMold, sMloc0, sTmp, sMold, sMold, sTmp))
    e('s_add_u32 s%d, s%d, 8192\ns_sub_u32 s%d, s%d, s%d\ns_cmp_eq_u32 s%d, 24576\ns_cselect_b32 s%d, s%d, s%d' % (sM, sM, sTmp, sM, sMloc0, sTmp, sM, sMloc0, sM))
    e.wait(lg=0)
    e('s_add_u32 s%d, s%d, 16384\ns_add_u32 s%d, s%d, 16384' % (sMr, sMr, sMp, sMp))
    remote_loads('r')
    stamp(e, cfg, 'end')
    e('s_barrier')
    stamp(e, cfg, 'bar')
    if cfg.get('stamps'): cfg['stamps'](e, w)
    if 'after_bar' in cfg: cfg['after_bar'](e, w)
    tail = e.vm[len(e.vm) - len(entry[0]):]
    assert [d for d, t in tail] == [d for d, t in entry[0]], (tail, entry[0])
    e('s_branch %s' % name)

    e.forget()
    e.label(name + '_first')
    part1(False)
    assert ring.get(6) == mid_ring[6] and ring.get(9) == mid_ring[9]
    e.wait(vm=0, lg=0)
    e('s_branch %s_mid' % name)

    if 'ready' in cfg:
        e.forget()
        e.label(name + '_wait')
        cfg['ready'](e, name + '_wl', lab_fail)
        e('s_branch %s_waited' % name)
    if w < 2:
        e.forget()
        e.label(name + '_redslow')
        for x in sentinel(OP0, nl): e(x)
        e('v_min_u32 v%d, -2, v%d' % (RES, RES))
        e('s_cbranch_vccnz %s_redagain' % name)
        e('s_waitcnt vmcnt(0)')
        for i in range(nl):
            e('v_mfma_f32_16x16x32_bf16 %s, %s, %s, %s' % (vr(RES, 4), vr(OP0 + 4 * i, 4), vr(SEL, 4), vr(RES, 4) if i else '0'))
        if w == 0:
            e(sw(32)); e(add2)
        else:
            e(add2); e(cp2); e(sw(32)); e(add2); e(cp2); e(sw(16)); e(add2)
        cvt(RES, RES, RES + 1)
        e('v_min_u32 v%d, -2, v%d' % (RES, RES))
        e('s_branch %s_redok' % name)
        e.label(name + '_redagain')
        if cfg.get('stamps'): e('s_add_u32 s96, s96, 1')
        spin_guard(e, lab_fail)
        e('s_branch %s_red' % name)
    e.forget()
    e.label(name + '_chkslow')
    if cfg.get('stamps'): e('s_add_u32 s97, s97, 1')
    spin_guard(e, lab_fail)
    if lov:
        pause(cfg.get('lovd', 100) - 48)
    else:
        e('s_waitcnt lgkmcnt(0)')
        local_loads()
        e('s_waitcnt vmcnt(0)')
    e('s_branch %s_chk' % name)
    e.forget()
    e.label(name + '_rslow')
    if cfg.get('stamps'): e('s_add_u32 s95, s95, 1')
    spin_guard(e, lab_fail)
    e('s_waitcnt lgkmcnt(0)')
    remote_loads('r')
    for x in remote_writes(): e(x)
    for x in sentinel(RST, len(RCH[w])): e(x)
    e('s_cbranch_vccnz %s_rslow' % name)
    e('s_waitcnt lgkmcnt(0)')
    e('s_branch %s_rok' % name)
    e.restore(last_state[0]); ring.clear(); ring.update(last_state[1])
    e.label(name + '_last')
    rest = VB[4:] + VC
    for i, key in enumerate(rest):
        if PLACE[key][0] == 'l': fetch(e, key, w)
        sm(key)
        if i + 4 < len(rest): rdA(rest[i + 4][1], ring[key[1]])
    cvt(KVP + 2, ACCV, ACCV + 1); cvt(KVP + 3, ACCV + 2, ACCV + 3)
    e('s_add_u32 s%d, s%d, %d' % (sKvm, sKvm, 32 * 4096))
    e('buffer_store_dwordx4 %s, v%d, s[48:51], s%d offen sc1' % (vr(KVP, 4), vL16, sKvm))
    e.wait(vm=0, lg=0)
    e('s_branch %s' % lab_exit)
```

```python
import re

REG = re.compile(r'^(-?)(?:abs\()?([vas])(?:(\d+)|\[(\d+):(\d+)\])\)?$')


def regs_of(tok):
    tok = tok.strip()
    if tok in ('vcc',): return {('s', 'vcc')}
    if tok in ('exec',): return {('s', 'exec')}
    if tok in ('exec_lo', 'exec_hi'): return {('s', 'exec')}
    if tok in ('vcc_lo', 'vcc_hi'): return {('s', 'vcc')}
    if tok == 'm0': return {('s', 'm0')}
    m = REG.match(tok)
    if not m: return set()
    k = m.group(2)
    if m.group(3) is not None: return {(k, int(m.group(3)))}
    return {(k, i) for i in range(int(m.group(4)), int(m.group(5)) + 1)}


TRANS = ('v_exp_f32', 'v_log_f32', 'v_rcp_f32', 'v_rsq_f32', 'v_sqrt_f32', 'v_sin_f32', 'v_cos_f32')


class Ins:
    __slots__ = ('text', 'op', 'R', 'W', 'cls', 'states', 'passes', 'srcC', 'D', 'AB', 'data', 'dpp')

    def __init__(self, text):
        self.text = text
        body = text.split(';')[0].strip()
        parts = body.split(None, 1)
        op = self.op = parts[0]
        rest = parts[1] if len(parts) > 1 else ''
        toks = [t.strip() for t in rest.split(',')] if rest else []
        mods = ''
        if toks:
            last = toks[-1].split()
            toks[-1] = last[0] if last else ''
            mods = ' '.join(last[1:])
        self.dpp = ('dpp' in op) or ('row_' in mods) or ('quad_perm' in mods)
        R, W = set(), set()
        self.states = 1
        self.passes = 0
        self.srcC = self.D = self.AB = self.data = frozenset()
        rs = [regs_of(t) for t in toks]
        if op.startswith('v_smfmac'):
            self.cls = 'mfma'; self.passes = 8 if '32x32' in op else 4
            W |= rs[0]; R |= rs[0] | rs[1] | rs[2] | rs[3]
            self.D = frozenset(rs[0]); self.srcC = frozenset(rs[0]); self.AB = frozenset(rs[1] | rs[2] | rs[3])
        elif op.startswith('v_mfma'):
            self.cls = 'mfma'; self.passes = 8 if '32x32' in op else 4
            W |= rs[0]; R |= rs[1] | rs[2] | rs[3]
            self.D = frozenset(rs[0]); self.srcC = frozenset(rs[3]); self.AB = frozenset(rs[1] | rs[2])
        elif op.startswith('v_'):
            self.cls = 'trans' if op.replace('_e32', '').replace('_e64', '') in TRANS else 'valu'
            if op.startswith('v_permlane') and 'swap' in op:
                W |= rs[0] | rs[1]; R |= rs[0] | rs[1]
            elif op.startswith('v_cmpx'):
                W |= rs[0] | {('s', 'exec')}
                for r in rs[1:]: R |= r
            elif op.startswith('v_add_co') or op.startswith('v_addc_co') or op.startswith('v_sub_co'):
                W |= rs[0] | rs[1]
                for r in rs[2:]: R |= r
            elif op == 'v_nop':
                pass
            else:
                W |= rs[0]
                for r in rs[1:]: R |= r
                if op.startswith('v_fmac') or op.startswith('v_writelane') or self.dpp or 'dot2c' in op: R |= rs[0]
            R.add(('s', 'exec'))
        elif op.startswith('ds_'):
            self.cls = 'ds'
            if op.startswith('ds_read') or op.startswith('ds_bpermute') or op.startswith('ds_swizzle') or '_rtn' in op:
                W |= rs[0]
                for r in rs[1:]: R |= r
            else:
                for r in rs: R |= r
        elif op.startswith('buffer_') or op.startswith('global_'):
            self.cls = 'vm'
            lds = ' lds' in (' ' + mods)
            if op in ('buffer_inv', 'buffer_wbl2'):
                pass
            elif 'load' in op and not lds:
                W |= rs[0]
                for r in rs[1:]: R |= r
            elif 'atomic' in op and 'sc0' in mods:
                W |= rs[0]
                for r in rs: R |= r
            else:
                for r in rs: R |= r
                if lds: R.add(('s', 'm0'))
                if 'store' in op and ('x3' in op or 'x4' in op):
                    self.data = frozenset(rs[0] if op.startswith('buffer_') else rs[1])
        elif op.startswith('s_load') or op.startswith('s_memtime') or op.startswith('s_memrealtime') or op.startswith('s_buffer_load') or op.startswith('s_atomic'):
            self.cls = 'smem'
            W |= rs[0]
            for r in rs[1:]: R |= r
        elif op == 's_nop':
            self.cls = 'nop'; self.states = int(toks[0]) + 1
        elif op in ('s_waitcnt', 's_barrier', 's_endpgm', 's_sleep', 's_setprio', 's_branch') or op.startswith('s_cbranch'):
            self.cls = 'ctl'
            if 'vcc' in op: R.add(('s', 'vcc'))
        elif op.startswith('s_cmp') or op.startswith('s_bitcmp'):
            self.cls = 'salu'
            for r in rs: R |= r
        elif op.startswith('s_'):
            self.cls = 'salu'
            W |= rs[0]
            for r in rs[1:]: R |= r
            if 'saveexec' in op: W.add(('s', 'exec')); R.add(('s', 'exec'))
        else:
            raise ValueError('unknown instruction: ' + text)
        self.R, self.W = R, W


def need_states(p, c):
    n = 0
    pv = p.cls in ('valu', 'trans')
    cv = c.cls in ('valu', 'trans')
    vW = {r for r in p.W if r[0] != 's'}
    sW = {r for r in p.W if r[0] == 's'}
    if p.cls == 'mfma':
        big = p.passes == 8
        if c.cls == 'mfma':
            if p.D & c.AB: n = max(n, 12 if big else 8)
            if p.D & c.srcC:
                if not (p.D == c.srcC and p.op == c.op): n = max(n, 10 if big else 6)
            elif p.D & c.D: n = max(n, 12 if big else 8)
        elif cv:
            if p.D & (c.R | c.W): n = max(n, 12 if big else 8)
            if p.srcC & c.W: n = max(n, 7 if big else 3)
        elif c.cls in ('ds', 'vm'):
            if p.D & (c.R | c.W): n = max(n, 12 if big else 8)
            if p.srcC & c.W: n = max(n, 7 if big else 3)
    if pv:
        if c.cls == 'mfma' and vW & c.R: n = max(n, 2)
        if cv:
            if vW & c.R:
                if c.op.startswith('v_permlane') or c.dpp: n = max(n, 2)
                if c.op.startswith('v_readlane') or c.op.startswith('v_readfirstlane'): n = max(n, 1)
                if p.cls == 'trans' and c.cls != 'trans': n = max(n, 1)
            s = sW - {('s', 'exec')}
            if s & c.R: n = max(n, 4 if (c.op.startswith('v_readlane') or c.op.startswith('v_writelane')) else 2)
            if ('s', 'exec') in sW:
                if c.dpp: n = max(n, 5)
                if c.op.startswith('v_permlane') or c.op.startswith('v_readlane') or c.op.startswith('v_readfirstlane'): n = max(n, 4)
        if c.cls == 'mfma' and ('s', 'exec') in sW: n = max(n, 4)
        if c.cls == 'vm' and sW & c.R: n = max(n, 5)
    if p.cls == 'vm' and p.data:
        if p.data & c.W: n = max(n, 2 if cv else 1)
    if p.cls == 'salu' and ('s', 'm0') in p.W and ('s', 'm0') in c.R and c.cls in ('vm', 'ds'): n = max(n, 1)
    return n


class Emitter:
    def __init__(self):
        self.out = []
        self.hist = []
        self.vm = []
        self.lg = []
        self.smem = False
        self.auto = True
        self.pipe_time = True
        self.count = 0

    def raw(self, text):
        self.out.append(text)

    def label(self, name):
        self.out.append(name + ':')

    def comment(self, t):
        self.out.append('; ' + t)

    def snapshot(self):
        return (list(self.vm), list(self.lg), self.smem, list(self.hist))

    def restore(self, s):
        self.vm, self.lg, self.smem, self.hist = list(s[0]), list(s[1]), s[2], list(s[3])

    def forget(self):
        self.vm, self.lg, self.smem, self.hist = [], [], False, []

    def _push(self, ins):
        self.out.append('    ' + ins.text)
        self.hist.append(ins)
        if len(self.hist) > 24: self.hist.pop(0)
        self.count += 1

    def wait(self, vm=None, lg=None):
        t = []
        if vm is not None and len(self.vm) > vm:
            assert vm <= 63
            t.append('vmcnt(%d)' % vm); self.vm = self.vm[len(self.vm) - vm:] if vm else []
        if lg is not None and (len(self.lg) > lg or (lg == 0 and self.smem)):
            lg = min(lg, 15)
            t.append('lgkmcnt(%d)' % lg); self.lg = self.lg[len(self.lg) - lg:] if lg else []
            if lg == 0: self.smem = False
        if t: self._push(Ins('s_waitcnt ' + ' '.join(t)))

    def wait_tag(self, tag):
        idx = [i for i, (d, t) in enumerate(self.vm) if t == tag]
        if idx: self.wait(vm=len(self.vm) - 1 - max(idx))

    def force_wait(self, text):
        ins = Ins('s_waitcnt ' + text)
        m = re.search(r'vmcnt\((\d+)\)', text)
        if m:
            n = int(m.group(1)); self.vm = self.vm[max(0, len(self.vm) - n):] if n else []
        m = re.search(r'lgkmcnt\((\d+)\)', text)
        if m:
            n = int(m.group(1)); self.lg = self.lg[max(0, len(self.lg) - n):] if n else []
            if n == 0: self.smem = False
        self._push(ins)

    def __call__(self, text, tag=None):
        for line in text.split('\n'):
            line = line.strip()
            if not line: continue
            if line.endswith(':'):
                self.label(line[:-1]); continue
            if line.startswith(';'):
                self.out.append(line); continue
            if line.startswith('s_waitcnt'):
                self.force_wait(line[len('s_waitcnt'):].strip()); continue
            self.ins(line, tag)

    def ins(self, text, tag=None):
        c = Ins(text)
        if self.auto:
            touch = c.R | c.W
            vmn = lgn = None
            for i, (d, t) in enumerate(self.vm):
                if d & touch: vmn = len(self.vm) - 1 - i
            for i, (d, t) in enumerate(self.lg):
                if d & touch: lgn = len(self.lg) - 1 - i
            if lgn is not None and self.smem: lgn = 0
            if self.smem and self.smem_regs & touch: lgn = 0
            if vmn is not None and vmn > 63: vmn = 63
            self.wait(vm=vmn, lg=lgn)
            t = []
            cur = 0
            last_m = None
            for p in self.hist:
                if p.cls == 'mfma' and last_m is not None and self.pipe_time: cur = max(cur, last_m)
                t.append(cur)
                if p.cls == 'mfma': last_m = cur + (2 if '16x16x16' in p.op else p.passes)
                cur += p.states
            if c.cls == 'mfma' and last_m is not None and self.pipe_time: cur_c = max(cur, last_m)
            else: cur_c = cur
            need = 0
            for p, tp in zip(self.hist, t):
                n = need_states(p, c)
                if n == 0: continue
                if cur_c - tp - 1 < n: need = max(need, n - (cur - tp - 1))
            while need > 0:
                k = min(need, 16)
                self._push(Ins('s_nop %d' % (k - 1))); need -= k
        self._push(c)
        if c.cls == 'vm':
            self.vm.append((frozenset(c.W), tag))
            assert len(self.vm) <= 200
        elif c.cls == 'ds':
            self.lg.append((frozenset(c.W), tag))
        elif c.cls == 'smem':
            if not self.smem: self.smem_regs = set()
            self.smem = True; self.smem_regs |= c.W

    smem_regs = set()

    def text(self):
        return '\n'.join(self.out) + '\n'


def vr(b, n=1):
    return 'v%d' % b if n == 1 else 'v[%d:%d]' % (b, b + n - 1)


def ar(b, n=1):
    return 'a%d' % b if n == 1 else 'a[%d:%d]' % (b, b + n - 1)


def sr(b, n=1):
    return 's%d' % b if n == 1 else 's[%d:%d]' % (b, b + n - 1)
```

```python
from emit import *
from chain2 import (WS_FLAG, WS_XN, WS_H, WS_KVM, WS_Q, WS_K, WS_V, WS_O, WS_BYTES, f32bits, SCALE_LOG2E, sWave, sSpin)

FG1 = WS_FLAG
FO = WS_FLAG + 1024
HTILE = 56 * 1024
DB_SYNC, DB_PAR, DB_LN, DB_KVM = 64, 68, 72, 76
K_X, K_MEM, K_WQ, K_WK, K_WV, K_WO, K_W1, K_B1, K_W2, K_B2, K_OUT = 0, 8, 16, 24, 32, 40, 64, 72, 80, 88, 96
sIdx = 16
sT = 32


def guard(e, fail):
    e('s_add_u32 s%d, s%d, 1\ns_cmp_gt_u32 s%d, 0x400000\ns_cbranch_scc1 %s' % (sSpin, sSpin, sSpin, fail))


def srd(e, b, koff, nbytes):
    e('s_load_dwordx2 s[%d:%d], s[0:1], %d\ns_mov_b32 s%d, %d\ns_mov_b32 s%d, 0x20000' % (b, b + 1, koff, b + 2, nbytes, b + 3))


def wait_counter(e, lab, off, value, fail, vt=(2, 3)):
    e('v_mov_b32 v%d, %d' % (vt[0], off))
    e.label(lab)
    e('buffer_load_dword v%d, v%d, s[60:63], 0 offen sc1\ns_waitcnt vmcnt(0)' % (vt[1], vt[0]))
    e('v_cmp_gt_u32 vcc, %d, v%d\ns_cbranch_vccz %s_ok' % (value, vt[1], lab))
    guard(e, fail)
    e('s_sleep 2\ns_branch %s' % lab)
    e.label(lab + '_ok')


def signal_counter(e, lab, off):
    e('s_waitcnt vmcnt(0)\ns_barrier\ns_cmp_lg_u32 s%d, 0\ns_cbranch_scc1 %s' % (sWave, lab))
    e('v_mov_b32 v2, %d\nv_mov_b32 v3, 1\ns_mov_b64 exec, 1\nbuffer_atomic_add v3, v2, s[60:63], 0 offen\ns_mov_b64 exec, -1' % off)
    e.label(lab)
    e.forget()


def rowsum(e, v, t):
    for k in (8, 4, 2, 1):
        e('v_add_f32_dpp v%d, v%d, v%d row_ror:%d row_mask:0xf bank_mask:0xf' % (v, v, v, k))


def layernorm(e, sSeg):
    srd(e, 12, K_X, 2621440)
    e('v_lshrrev_b32 v1, 4, v0\nv_and_b32 v2, 15, v0')
    e('v_mul_u32_u24 v3, 1280, v1\nv_lshl_add_u32 v3, v2, 4, v3')
    e('v_lshrrev_b32 v4, 2, v2\nv_lshlrev_b32 v4, 10, v4\nv_and_b32 v5, 3, v2\nv_lshl_add_u32 v4, v5, 8, v4\nv_lshl_add_u32 v4, v1, 4, v4')
    e('s_lshl_b32 s%d, s%d, 5\ns_lshl_b32 s%d, s%d, 3\ns_add_u32 s%d, s%d, s%d' % (sT, sSeg, sT + 1, sWave, sT, sT, sT + 1))
    e('s_mul_i32 s%d, s%d, 1280' % (sT + 1, sT))
    e('s_lshr_b32 s%d, s%d, 4\ns_mul_i32 s%d, s%d, 20480\ns_and_b32 s%d, s%d, 15\ns_lshl_b32 s%d, s%d, 4\ns_add_u32 s%d, s%d, s%d\ns_add_u32 s%d, s%d, %d'
      % (sT + 2, sT, sT + 2, sT + 2, sT + 3, sT, sT + 3, sT + 3, sT + 2, sT + 2, sT + 3, sT + 2, sT + 2, WS_XN))
    e('s_add_u32 s%d, s%d, 5120\ns_mov_b32 s%d, 0xffff0000' % (sT + 3, sT + 1, sT + 4))
    e('s_waitcnt lgkmcnt(0)')
    RAW = (8, 28)
    for r in range(2):
        for m in range(5):
            e('buffer_load_dwordx4 %s, v3, s[12:15], s%d offen offset:%d' % (vr(RAW[r] + 4 * m, 4), sT + 1 + 2 * r, m * 256))
    X = 48
    for r in range(2):
        raw = RAW[r]
        for i in range(20):
            e('v_lshlrev_b32 v%d, 16, v%d\nv_and_b32 v%d, s%d, v%d' % (X + 2 * i, raw + i, X + 2 * i + 1, sT + 4, raw + i))
        e('v_add_f32 v5, v%d, v%d\nv_add_f32 v6, v%d, v%d' % (X, X + 1, X + 2, X + 3))
        for i in range(4, 40, 2): e('v_add_f32 v5, v5, v%d\nv_add_f32 v6, v6, v%d' % (X + i, X + i + 1))
        e('v_add_f32 v5, v5, v6')
        rowsum(e, 5, 6)
        e('v_mul_f32 v5, 0x%x, v5' % f32bits(1 / 640))
        e('v_mov_b32 v6, 0\nv_mov_b32 v7, 0')
        for i in range(0, 40, 2):
            e('v_sub_f32 v88, v%d, v5\nv_sub_f32 v89, v%d, v5\nv_fmac_f32 v6, v88, v88\nv_fmac_f32 v7, v89, v89' % (X + i, X + i + 1))
        e('v_add_f32 v6, v6, v7')
        rowsum(e, 6, 7)
        e('v_mul_f32 v6, 0x%x, v6' % f32bits(1 / 640))
        e('v_cvt_pk_bf16_f32 v7, v5, v6\nv_lshlrev_b32 v5, 16, v7\nv_and_b32 v6, s%d, v7' % (sT + 4))
        e('v_add_f32 v6, 0x%x, v6\nv_cvt_pk_bf16_f32 v6, v6, v6\nv_and_b32 v6, s%d, v6' % (f32bits(1e-5), sT + 4))
        e('v_sqrt_f32 v6, v6\nv_cvt_pk_bf16_f32 v6, v6, v6\nv_and_b32 v6, s%d, v6\nv_rcp_f32 v6, v6' % (sT + 4))
        for i in range(20):
            a, b = X + 2 * i, X + 2 * i + 1
            e('v_sub_f32 v%d, v%d, v5\nv_sub_f32 v%d, v%d, v5\nv_cvt_pk_bf16_f32 v%d, v%d, v%d' % (a, a, b, b, b, a, b))
            e('v_lshlrev_b32 v%d, 16, v%d\nv_and_b32 v%d, s%d, v%d' % (a, b, b, sT + 4, b))
            e('v_mul_f32 v%d, v%d, v6\nv_mul_f32 v%d, v%d, v6\nv_cvt_pk_bf16_f32 v%d, v%d, v%d' % (a, a, b, b, raw + i, a, b))
        for m in range(5):
            e('s_add_u32 s%d, s%d, %d' % (sT + 5, sT + 2, m * 4096 + r * 64))
            e('buffer_store_dwordx4 %s, v4, s[8:11], s%d offen sc1' % (vr(raw + 4 * m, 4), sT + 5))


def wreg(q, nv0):
    return ('a', 4 * q) if q < 64 else ('v', nv0 + 4 * (q - 64))


def wname(r):
    return (ar if r[0] == 'a' else vr)(r[1], 4)


def load_weights(e, steps, vaddr, nv0, tmp, depth, sel):
    def issue(i):
        d, soff, stride, q = steps[i]
        b = tmp + 8 * (i % depth)
        soff(e, sT + 6)
        for t in range(8):
            if t * stride < 4096 or t == 0:
                e('buffer_load_dword v%d, v%d, s[%d:%d], s%d offen offset:%d' % (b + t, vaddr(i), d, d + 3, sT + 6, t * stride))
            else:
                e('s_add_u32 s%d, s%d, %d' % (sT + 7, sT + 6, t * stride))
                e('buffer_load_dword v%d, v%d, s[%d:%d], s%d offen' % (b + t, vaddr(i), d, d + 3, sT + 7))

    for i in range(min(depth, len(steps))): issue(i)
    for i in range(len(steps)):
        q = steps[i][3]
        b = tmp + 8 * (i % depth)
        for u in range(2):
            r = wreg(q + u, nv0)
            for j in range(4):
                if r[0] == 'v':
                    e('v_perm_b32 v%d, v%d, v%d, s%d' % (r[1] + j, b + 2 * j + 1, b + 2 * j, sel + u))
                else:
                    e('v_perm_b32 v%d, v%d, v%d, s%d\nv_accvgpr_write_b32 a%d, v%d' % (2 + (j & 1), b + 2 * j + 1, b + 2 * j, sel + u, r[1] + j, 2 + (j & 1)))
        if i + depth < len(steps): issue(i + depth)


def perm_selectors(e, sel):
    e('s_mov_b32 s%d, 0x05040100\ns_mov_b32 s%d, 0x07060302' % (sel, sel + 1))


def gemm1(e, fail):
    sPair, sStr, sSeg, sN = 18, 19, 20, 21
    sCol0, sCol1, sStride, sOut0, sOut1, sOutStep, sBuf, sXn, sFlag = 22, 23, 24, 25, 26, 27, 28, 29, 30
    SEL = 40
    e('s_cmp_ge_u32 s%d, 55\ns_cselect_b32 s%d, 1, 0\ns_mul_i32 s%d, s%d, 55\ns_sub_u32 s%d, s%d, s%d' % (sIdx, sStr, sT, sStr, sPair, sIdx, sT))
    e('s_lshl_b32 s%d, s%d, 6' % (sT + 1, sWave))
    e('s_cmp_lt_u32 s%d, 32\ns_cbranch_scc1 G1_kv\ns_cmp_lt_u32 s%d, 48\ns_cbranch_scc1 G1_qq' % (sPair, sPair))
    srd(e, 12, K_W1, 640 * 3456); srd(e, 44, K_W1, 640 * 3456)
    e('s_sub_u32 s%d, s%d, 48\ns_lshl_b32 s%d, s%d, 9\ns_add_u32 s%d, s%d, s%d\ns_add_u32 s%d, s%d, 256' % (sT, sPair, sCol0, sT, sCol0, sCol0, sT + 1, sCol1, sCol0))
    e('s_mov_b32 s%d, 3456' % sStride)
    e('s_lshl_b32 s%d, s%d, 13\ns_lshl_b32 s%d, s%d, 10\ns_add_u32 s%d, s%d, s%d\ns_mul_i32 s%d, s%d, %d\ns_add_u32 s%d, s%d, s%d\ns_add_u32 s%d, s%d, %d\ns_add_u32 s%d, s%d, 4096\ns_mov_b32 s%d, %d'
      % (sOut0, sT, sT + 2, sWave, sOut0, sOut0, sT + 2, sT + 2, sStr, 2 * HTILE, sOut0, sOut0, sT + 2, sOut0, sOut0, WS_H, sOut1, sOut0, sOutStep, 4 * HTILE))
    e('s_branch G1_go')
    e.label('G1_qq')
    srd(e, 12, K_WQ, 5242880); srd(e, 44, K_WQ, 5242880)
    e('s_sub_u32 s%d, s%d, 32\ns_lshl_b32 s%d, s%d, 9\ns_add_u32 s%d, s%d, s%d\ns_add_u32 s%d, s%d, 256' % (sT, sPair, sCol0, sT, sCol0, sCol0, sT + 1, sCol1, sCol0))
    e('s_lshl_b32 s%d, s%d, 14\ns_add_u32 s%d, s%d, %d\ns_add_u32 s%d, s%d, 8192' % (sOut0, sT, sOut0, sOut0, WS_Q, sOut1, sOut0))
    e('s_branch G1_att')
    e.label('G1_kv')
    srd(e, 12, K_WK, 5242880); srd(e, 44, K_WV, 5242880)
    e('s_lshl_b32 s%d, s%d, 8\ns_add_u32 s%d, s%d, s%d\ns_mov_b32 s%d, s%d' % (sCol0, sPair, sCol0, sCol0, sT + 1, sCol1, sCol0))
    e('s_lshl_b32 s%d, s%d, 13\ns_add_u32 s%d, s%d, %d\ns_add_u32 s%d, s%d, %d' % (sOut0, sPair, sOut1, sOut0, WS_V, sOut0, sOut0, WS_K))
    e.label('G1_att')
    e('s_mov_b32 s%d, 8192\ns_lshl_b32 s%d, s%d, 11\ns_lshl_b32 s%d, s%d, 18\ns_add_u32 s%d, s%d, s%d\ns_add_u32 s%d, s%d, s%d\ns_add_u32 s%d, s%d, s%d\ns_mov_b32 s%d, %d'
      % (sStride, sT + 2, sWave, sT + 3, sStr, sT + 2, sT + 2, sT + 3, sOut0, sOut0, sT + 2, sOut1, sOut1, sT + 2, sOutStep, 2 * 32 * 8192))
    e.label('G1_go')
    e('s_waitcnt lgkmcnt(0)')
    e.forget()
    perm_selectors(e, SEL)
    vL16, vW = 1, 4
    e('v_lshlrev_b32 v%d, 4, v0\nv_lshrrev_b32 v5, 4, v0\nv_and_b32 v6, 15, v0\ns_lshl_b32 s%d, s%d, 3\nv_mul_lo_u32 v%d, v5, s%d\nv_lshl_add_u32 v%d, v6, 2, v%d' % (vL16, sT, sStride, vW, sT, vW, vW))
    e('s_lshl_b32 s42, s%d, 5' % sStride)
    for t in range(1, 8): e('s_mul_i32 s%d, s%d, %d' % (64 + t, sStride, t))
    NV0, TMP, DEPTH = 192, 64, 7

    def issue(i):
        b, kk = divmod(i, 20)
        d = 12 if b == 0 else 44
        base = TMP + 8 * (i % DEPTH)
        if kk == 0: e('s_mov_b32 s43, s%d' % (sCol1 if b else sCol0))
        else: e('s_add_u32 s43, s43, s42')
        for t in range(8):
            if t: e('s_add_u32 s%d, s43, s%d' % (sT + 7, 64 + t))
            e('buffer_load_dword v%d, v%d, s[%d:%d], s%d offen' % (base + t, vW, d, d + 3, sT + 7 if t else 43))

    for i in range(DEPTH): issue(i)
    for i in range(40):
        base = TMP + 8 * (i % DEPTH)
        for u in range(2):
            r = wreg(2 * i + u, NV0)
            for j in range(4):
                if r[0] == 'v':
                    e('v_perm_b32 v%d, v%d, v%d, s%d' % (r[1] + j, base + 2 * j + 1, base + 2 * j, SEL + u))
                else:
                    e('v_perm_b32 v%d, v%d, v%d, s%d\nv_accvgpr_write_b32 a%d, v%d' % (2 + (j & 1), base + 2 * j + 1, base + 2 * j, SEL + u, r[1] + j, 2 + (j & 1)))
        if i + DEPTH < 40: issue(i + DEPTH)
    wait_counter(e, 'G1_ln', DB_LN, 64, fail)
    e('s_mul_i32 s%d, s%d, 40960\ns_mul_i32 s%d, s%d, 10240\ns_add_u32 s%d, s%d, s%d\ns_add_u32 s%d, s%d, %d' % (sXn, sStr, sT, sWave, sXn, sXn, sT, sXn, sXn, WS_XN))
    e('s_mul_i32 s%d, s%d, 10240\ns_mov_b32 s%d, 0' % (sBuf, sWave, sN))
    e('s_lshl_b32 s%d, s%d, 8\ns_lshl_b32 s%d, s%d, 2\ns_add_u32 s%d, s%d, s%d\ns_add_u32 s%d, s%d, %d' % (sFlag, sStr, sT, sPair, sFlag, sFlag, sT, sFlag, sFlag, FG1))
    vRd = 5

    def dma():
        for i in range(10):
            if i % 4 == 0:
                e('s_add_u32 m0, s%d, %d\ns_add_u32 s%d, s%d, %d' % (sBuf, i * 1024, sT, sXn, i * 1024))
            e('buffer_load_dwordx4 v%d, s[8:11], s%d offen offset:%d sc1 lds' % (vL16, sT, (i % 4) * 1024), tag='x')
        e('s_add_u32 s%d, s%d, %d' % (sXn, sXn, 2 * 40960))

    dma()
    e('s_waitcnt vmcnt(0)')
    e('v_mov_b32 v%d, v%d' % (vRd, vL16))
    ACC, FR, OUTR, BIAS = 8, 40, 72, 96
    acc = lambda b, u, t: ACC + 4 * (4 * b + 2 * u + t)
    e('s_cmp_lt_u32 s%d, 32\ns_cbranch_scc1 G1L_kv\ns_cmp_lt_u32 s%d, 48\ns_cbranch_scc1 G1L_qq' % (sPair, sPair))
    srd(e, 48, K_B1, 3456)
    e('v_lshrrev_b32 v6, 4, v0\nv_lshlrev_b32 v6, 4, v6\ns_waitcnt lgkmcnt(0)')
    for b in range(2):
        e('buffer_load_dwordx4 %s, v6, s[48:51], s%d offen' % (vr(OUTR + 4 * b, 4), sCol1 if b else sCol0))
    e('s_mov_b32 s%d, 0xffff0000' % sT)
    for b in range(2):
        for i in range(4):
            e('v_lshlrev_b32 v%d, 16, v%d\nv_and_b32 v%d, s%d, v%d' % (BIAS + 8 * b + i, OUTR + 4 * b + i, BIAS + 8 * b + 4 + i, sT, OUTR + 4 * b + i))
    c0 = -2 * (2 / 3.141592653589793) ** 0.5 * 1.4426950408889634
    e('s_mov_b32 s52, 0x%x\ns_mov_b32 s53, 0x%x' % (f32bits(c0), f32bits(c0 * 0.044715)))
    e('v_mov_b32 v7, s52')

    for kind in ('hh', 'qq', 'kv'):
        L = 'G1L_' + kind
        e.forget()
        e.label(L)
        e('s_waitcnt vmcnt(4)\ns_barrier')
        e('s_cmp_lt_u32 s%d, 2\ns_cbranch_scc1 %s_nf\ns_cmp_lg_u32 s%d, 0\ns_cbranch_scc1 %s_nf' % (sN, L, sWave, L))
        e('s_sub_u32 s%d, s%d, 1\nv_mov_b32 v2, s%d\nv_mov_b32 v3, 0\ns_mov_b64 exec, 1\nbuffer_store_dword v2, v3, s[8:11], s%d offen sc1\ns_mov_b64 exec, -1' % (sT, sN, sT, sFlag))
        e.label(L + '_nf')
        e('s_xor_b32 s%d, s%d, 0x10000' % (sBuf, sBuf))
        e('s_cmp_eq_u32 s%d, 31\ns_cbranch_scc1 %s_nd' % (sN, L))
        dma()
        e.label(L + '_nd')
        e.forget()
        rd = lambda kk, t: e('ds_read_b128 %s, v%d offset:%d' % (vr(FR + 4 * ((2 * kk + t) % 8), 4), vRd, t * 20480 + kk * 1024))
        for kk in range(3):
            for t in range(2): rd(kk, t)
        for kk in range(20):
            n = 0
            for b in range(2):
                for u in range(2):
                    wq = wname(wreg(2 * (20 * b + kk) + u, NV0))
                    for t in range(2):
                        f = vr(FR + 4 * ((2 * kk + t) % 8), 4)
                        swap = kind == 'kv' and b == 1
                        cin = vr(acc(b, u, t), 4) if kk else (vr(BIAS + 8 * b + 4 * u, 4) if kind == 'hh' else '0')
                        e('v_mfma_f32_16x16x32_bf16 %s, %s, %s, %s' % (vr(acc(b, u, t), 4), f if swap else wq, wq if swap else f, cin))
                        n += 1
                        if n in (1, 3) and kk + 3 < 20: rd(kk + 3, n >> 1)
        e('v_xor_b32 v%d, 0x10000, v%d' % (vRd, vRd))
        for b in range(2):
            so = sOut1 if b else sOut0
            for x in range(2):
                o = OUTR + 4 * (2 * b + x)
                if kind == 'hh':
                    for u in range(2):
                        for i in range(4):
                            h = acc(b, u, x) + i
                            e('v_mul_f32 v2, v%d, v%d\nv_fma_f32 v2, v2, s53, v7\nv_mul_f32 v2, v%d, v2\nv_exp_f32 v2, v2\nv_add_f32 v2, 1.0, v2\nv_rcp_f32 v2, v2\nv_mul_f32 v%d, v%d, v2' % (h, h, h, h, h))
                    for i in range(4): e('v_cvt_pk_bf16_f32 v%d, v%d, v%d' % (o + i, acc(b, 0, x) + i, acc(b, 1, x) + i))
                    if x: e('s_add_u32 s%d, s%d, %d' % (sT, so, HTILE))
                    e('buffer_store_dwordx4 %s, v%d, s[8:11], s%d offen sc1' % (vr(o, 4), vL16, sT if x else so))
                else:
                    swap = kind == 'kv' and b == 1
                    for y in range(2):
                        a = acc(b, x, y) if swap else acc(b, y, x)
                        for i in range(2): e('v_cvt_pk_bf16_f32 v%d, v%d, v%d' % (o + 2 * y + i, a + 2 * i, a + 2 * i + 1))
                    e('buffer_store_dwordx4 %s, v%d, s[8:11], s%d offen offset:%d sc1' % (vr(o, 4), vL16, so, x * 1024))
        e('s_add_u32 s%d, s%d, s%d\ns_add_u32 s%d, s%d, s%d' % (sOut0, sOut0, sOutStep, sOut1, sOut1, sOutStep))
        e('s_add_u32 s%d, s%d, 1\ns_cmp_lt_u32 s%d, 32\ns_cbranch_scc1 %s\ns_branch G1_done' % (sN, sN, sN, L))
    e.forget()
    e.label('G1_done')
    e('s_waitcnt vmcnt(0)\ns_barrier\ns_cmp_lg_u32 s%d, 0\ns_cbranch_scc1 L_end' % sWave)
    e('v_mov_b32 v2, 32\nv_mov_b32 v3, 0\ns_mov_b64 exec, 1\nbuffer_store_dword v2, v3, s[8:11], s%d offen sc1\ns_waitcnt vmcnt(0)\ns_branch L_end' % sFlag)


NATT = 22


def attention(e, fail):
    sJob, sSeg, sH, sQo, sKvm, sOo, sLds = 18, 19, 20, 21, 22, 23, 24
    sC, sNegC, sLo, sMask = 28, 29, 30, 44
    vL16, vL8, vTr, vFl = 1, 4, 5, 6
    e('v_lshlrev_b32 v%d, 4, v0' % vL16)
    e('v_mov_b32 v8, -1\nv_mov_b32 v9, -1\nv_mov_b32 v10, -1\nv_mov_b32 v11, -1')
    e('s_lshl_b32 s%d, s%d, 2\ns_add_u32 s%d, s%d, s%d' % (sJob, sIdx, sJob, sJob, sWave))
    e('s_mov_b32 s%d, s%d' % (sT, sJob))
    e.label('AT_init')
    e('s_lshl_b32 s%d, s%d, 12\ns_add_u32 s%d, s%d, %d' % (sT + 1, sT, sT + 1, sT + 1, WS_KVM))
    for i in range(4): e('buffer_store_dwordx4 v[8:11], v%d, s[8:11], s%d offen offset:%d sc1' % (vL16, sT + 1, i * 1024))
    e('s_add_u32 s%d, s%d, %d\ns_cmp_lt_u32 s%d, 2048\ns_cbranch_scc1 AT_init' % (sT, sT, 4 * NATT, sT))
    signal_counter(e, 'AT_sig', DB_KVM)
    e('s_lshl_b32 s%d, s%d, 11' % (sLds, sWave))
    e('v_lshlrev_b32 v%d, 3, v0\nv_add_u32 v%d, s%d, v%d' % (vL8, vL8, sLds, vL8))
    e('v_lshrrev_b32 v11, 4, v0\nv_and_b32 v12, 15, v0')
    e('v_and_b32 v14, 1, v12\nv_lshlrev_b32 v14, 7, v14\nv_lshrrev_b32 v15, 2, v12\nv_lshl_add_u32 v15, v11, 2, v15\nv_lshl_add_u32 v%d, v15, 3, v14\nv_add_u32 v%d, s%d, v%d' % (vTr, vTr, sLds, vTr))
    e('s_mov_b32 s%d, 0x%x\ns_mov_b32 s%d, 0x%x\ns_mov_b32 s%d, -1\ns_mov_b32 s%d, 0' % (sC, f32bits(SCALE_LOG2E), sNegC, f32bits(-SCALE_LOG2E), sLo, sLo + 1))
    e('v_lshlrev_b32 v13, 2, v11')
    for i in range(4): e('v_add_u32 v14, %d, v13\nv_cmp_le_u32 s[%d:%d], v14, v12' % (i, sMask + 2 * i, sMask + 2 * i + 1))
    ONES, HALF, NEG = 8, 12, 7
    for i in range(4): e('v_mov_b32 v%d, 0x3f803f80' % (ONES + i))
    for i in range(2): e('v_mov_b32 v%d, 0x3f003f00' % (HALF + i))
    e('v_mov_b32 v%d, 0x%x' % (NEG, f32bits(-1e9 * 128 ** 0.5)))
    Q, K, V, KV, KM, S, P, X, O, L, T = 16, 48, 80, 112, 128, 144, 164, 176, 192, 200, 208
    e.label('AT_job')
    e.forget()
    e('s_lshr_b32 s%d, s%d, 5\ns_and_b32 s%d, s%d, 31' % (sSeg, sJob, sH, sJob))
    e('s_and_b32 s%d, s%d, 1\ns_lshl_b32 s%d, s%d, 8\ns_add_u32 s%d, s%d, %d' % (sT, sSeg, sT, sT, sT, sT, FG1))
    e('s_lshr_b32 s%d, s%d, 1\ns_add_u32 s%d, s%d, 32\ns_lshl_b32 s%d, s%d, 2\ns_lshl_b32 s%d, s%d, 2' % (sT + 1, sH, sT + 1, sT + 1, sT + 1, sT + 1, sT + 2, sH))
    e('v_mov_b32 v%d, s%d\nv_mov_b32 v2, s%d\nv_cmp_eq_u32 vcc, 1, v0\nv_cndmask_b32 v%d, v%d, v2, vcc' % (vFl, sT + 2, sT + 1, vFl, vFl))
    e('s_lshr_b32 s%d, s%d, 1' % (sT + 1, sSeg))
    e.label('AT_w1')
    e('buffer_load_dword v2, v%d, s[8:11], s%d offen sc1\ns_waitcnt vmcnt(0)\nv_cmp_ge_u32 vcc, s%d, v2\ns_cbranch_vccz AT_w1ok' % (vFl, sT, sT + 1))
    guard(e, fail)
    e('s_sleep 8\ns_branch AT_w1')
    e.label('AT_w1ok')
    e('s_lshl_b32 s%d, s%d, 13' % (sQo, sJob))
    for b, base in ((Q, WS_Q), (K, WS_K), (V, WS_V)):
        for hf in range(2):
            e('s_add_u32 s%d, s%d, %d' % (sT + 3, sQo, base + hf * 4096))
            for i in range(4):
                e('buffer_load_dwordx4 %s, v%d, s[8:11], s%d offen offset:%d sc1' % (vr(b + 16 * hf + 4 * i, 4), vL16, sT + 3, i * 1024))
    e('s_lshl_b32 s%d, s%d, 12\ns_add_u32 s%d, s%d, %d' % (sKvm, sJob, sKvm, sKvm, WS_KVM))
    e('s_lshl_b32 s%d, s%d, 18\ns_lshl_b32 s%d, s%d, 12\ns_add_u32 s%d, s%d, s%d\ns_add_u32 s%d, s%d, %d' % (sOo, sSeg, sT, sH, sOo, sOo, sT, sOo, sOo, WS_O))
    q = lambda j, t: vr(Q + 8 * j + 4 * t, 4)
    k = lambda j, t: vr(K + 8 * j + 4 * t, 4)
    S00, S01, S11, SM0, SM1 = S, S + 4, S + 8, S + 12, S + 16
    for j in range(4):
        for a, kt, qt in ((S00, 0, 0), (S01, 0, 1), (S11, 1, 1)):
            e('v_mfma_f32_16x16x32_bf16 %s, %s, %s, %s' % (vr(a, 4), k(j, kt), q(j, qt), vr(a, 4) if j else '0'))
    for a in (S00, S11):
        for i in range(4): e('v_cndmask_b32 v%d, v%d, v%d, s[%d:%d]' % (a + i, NEG, a + i, sMask + 2 * i, sMask + 2 * i + 1))
    e.wait(vm=0)
    e.label('AT_w2')
    for i in range(4): e('buffer_load_dwordx4 %s, v%d, s[8:11], s%d offen offset:%d sc1' % (vr(KV + 4 * i, 4), vL16, sKvm, i * 1024))
    e('v_max3_u32 v2, v%d, v%d, v%d\nv_max_u32 v2, v2, v%d' % (KV, KV + 1, KV + 2, KV + 3))
    for i in range(4, 16, 2): e('v_max3_u32 v2, v2, v%d, v%d' % (KV + i, KV + i + 1))
    e('v_cmp_eq_u32 vcc, -1, v2\ns_cbranch_vccz AT_w2ok')
    guard(e, fail)
    e('s_sleep 4\ns_branch AT_w2')
    e.label('AT_w2ok')
    for i in range(4): e('ds_write_b64 v%d, %s offset:%d' % (vL8, vr(KV + 4 * i, 2), i * 512))
    for i in range(4):
        for x in range(2):
            e('v_cndmask_b32 v%d, 0, v%d, s[%d:%d]' % (X + 4 * i + x, KV + 4 * i + 2 + x, sLo, sLo + 1))
            e('v_cndmask_b32 v%d, v%d, 0, s[%d:%d]' % (X + 4 * i + 2 + x, KV + 4 * i + 2 + x, sLo, sLo + 1))
    e.wait(lg=0)
    for j in range(4):
        for u in range(2): e('ds_read_b64_tr_b16 %s, v%d offset:%d' % (vr(KM + 4 * j + 2 * u, 2), vTr, j * 512 + u * 256))
    for j in range(4):
        for a, qt in ((SM0, 0), (SM1, 1)):
            e('v_mfma_f32_16x16x32_bf16 %s, %s, %s, %s' % (vr(a, 4), vr(KM + 4 * j, 4), q(j, qt), vr(a, 4) if j else '0'))
    for qt in range(2):
        vals = ([S00 + i for i in range(4)] if qt == 0 else [S01 + i for i in range(8)]) + [(SM1 if qt else SM0) + i for i in range(4)]
        m, t = T + 2 * qt, T + 2 * qt + 1
        e('v_max3_f32 v%d, v%d, v%d, v%d' % (m, vals[0], vals[1], vals[2]))
        for i in range(3, len(vals) - 1, 2): e('v_max3_f32 v%d, v%d, v%d, v%d' % (m, m, vals[i], vals[i + 1]))
        e('v_max_f32 v%d, v%d, v%d' % (m, m, vals[-1]))
        for kk in (32, 16):
            e('v_mov_b32 v%d, v%d\nv_permlane%d_swap_b32 v%d, v%d\nv_max_f32 v%d, v%d, v%d' % (t, m, kk, m, t, m, m, t))
        e('v_mul_f32 v%d, s%d, v%d' % (m, sNegC, m))
        for v in vals: e('v_fma_f32 v%d, v%d, s%d, v%d' % (v, v, sC, m))
        for v in vals: e('v_exp_f32 v%d, v%d' % (v, v))
        px, pm = P + 6 * qt, P + 6 * qt + 4
        for i in range(len(vals) // 2 - 2): e('v_cvt_pk_bf16_f32 v%d, v%d, v%d' % (px + i, vals[2 * i], vals[2 * i + 1]))
        if qt == 0: e('v_mov_b32 v%d, 0\nv_mov_b32 v%d, 0' % (px + 2, px + 3))
        for i in range(2): e('v_cvt_pk_bf16_f32 v%d, v%d, v%d' % (pm + i, vals[-4 + 2 * i], vals[-3 + 2 * i]))
    for qt in range(2):
        e('v_mfma_f32_16x16x32_bf16 %s, %s, %s, 0' % (vr(L + 4 * qt, 4), vr(ONES, 4), vr(P + 6 * qt, 4)))
    for qt in range(2):
        e('v_mfma_f32_16x16x16_bf16 %s, %s, %s, %s' % (vr(L + 4 * qt, 4), vr(HALF, 2), vr(P + 6 * qt + 4, 2), vr(L + 4 * qt, 4)))
    D = lambda w, u, qt: K + 8 * (w & 1) * 2 + 8 * qt + 4 * u
    for wp in range(2):
        for w in (2 * wp, 2 * wp + 1):
            for qt in range(2):
                for u in range(2):
                    e('v_mfma_f32_16x16x32_bf16 %s, %s, %s, 0' % (vr(D(w, u, qt), 4), vr(V + 8 * w + 4 * u, 4), vr(P + 6 * qt, 4)))
        if wp == 0:
            for qt in range(2): e('v_rcp_f32 v%d, v%d' % (T + qt, L + 4 * qt))
        for w in (2 * wp, 2 * wp + 1):
            for qt in range(2):
                for u in range(2):
                    e('v_mfma_f32_16x16x16_bf16 %s, %s, %s, %s' % (vr(D(w, u, qt), 4), vr(X + 4 * w + 2 * u, 2), vr(P + 6 * qt + 4, 2), vr(D(w, u, qt), 4)))
        for w in (2 * wp, 2 * wp + 1):
            for qt in range(2):
                o = O + 4 * (qt & 1)
                for u in range(2):
                    for i in range(4): e('v_mul_f32 v%d, v%d, v%d' % (D(w, u, qt) + i, D(w, u, qt) + i, T + qt))
                for i in range(4): e('v_cvt_pk_bf16_f32 v%d, v%d, v%d' % (o + i, D(w, 0, qt) + i, D(w, 1, qt) + i))
                if qt: e('s_add_u32 s%d, s%d, 131072' % (sT, sOo))
                e('buffer_store_dwordx4 %s, v%d, s[8:11], s%d offen offset:%d sc1' % (vr(o, 4), vL16, sT if qt else sOo, w * 1024))
    e('s_lshl_b32 s%d, s%d, 2\ns_add_u32 s%d, s%d, %d\nv_mov_b32 v2, 1\nv_mov_b32 v3, 0' % (sT, sJob, sT, sT, FO))
    e('s_waitcnt vmcnt(0)\ns_mov_b64 exec, 1\nbuffer_store_dword v2, v3, s[8:11], s%d offen sc1\ns_mov_b64 exec, -1' % sT)
    e('s_add_u32 s%d, s%d, %d\ns_cmp_lt_u32 s%d, 2048\ns_cbranch_scc1 AT_job' % (sJob, sJob, 4 * NATT, sJob))
    e('s_waitcnt vmcnt(0)\ns_branch L_end')


def outproj(e, fail):
    sGrp, sCb, sTile, sHo, sOo, sH0, sRow = 18, 19, 20, 21, 22, 23, 24
    SEL = 40
    vL16, vW, vFl, vXo = 1, 4, 5, 6
    e('s_mul_i32 s%d, s%d, 3277\ns_lshr_b32 s%d, s%d, 16\ns_mul_i32 s%d, s%d, 20\ns_sub_u32 s%d, s%d, s%d' % (sGrp, sIdx, sGrp, sGrp, sT, sGrp, sCb, sIdx, sT))
    srd(e, 12, K_WO, 5242880); srd(e, 44, K_W2, 1728 * 1280); srd(e, 48, K_B2, 1280); srd(e, 52, K_X, 2621440); srd(e, 64, K_OUT, 2621440)
    perm_selectors(e, SEL)
    e('v_lshlrev_b32 v%d, 4, v0\nv_lshrrev_b32 v7, 4, v0\nv_and_b32 v8, 15, v0' % vL16)
    e('v_mul_u32_u24 v%d, 10240, v7\nv_lshl_add_u32 v%d, v8, 2, v%d' % (vW, vW, vW))
    e('v_mul_u32_u24 v%d, 1280, v8\nv_lshl_add_u32 v%d, v7, 4, v%d' % (vXo, vXo, vXo))
    e('s_lshl_b32 s%d, s%d, 6' % (sCb, sCb))
    e('s_mul_i32 s%d, s%d, 14\ns_cmp_eq_u32 s%d, 3\ns_cselect_b32 s%d, 41, s%d' % (sH0, sWave, sWave, sH0, sH0))
    e('s_mul_i32 s42, s%d, %d\ns_add_u32 s42, s42, s%d\ns_mul_i32 s43, s%d, 40960\ns_add_u32 s43, s43, s%d' % (sWave, 32 * 40960, sCb, sH0, sCb))
    e('s_waitcnt lgkmcnt(0)')
    NV0, TMP, DEPTH = 144, 80, 7
    steps = [(12, (lambda e, d, i=i: e('s_add_u32 s%d, s42, %d' % (d, i * 40960))), 1280, 2 * i) for i in range(32)]
    steps += [(44, (lambda e, d, i=i: e('s_add_u32 s%d, s43, %d' % (d, i * 40960))), 1280, 64 + 2 * i) for i in range(14)]
    load_weights(e, steps, lambda i: vW, NV0, TMP, DEPTH, SEL)
    B2, XR, ACC, FR = 8, 16, 20, 32
    e('v_lshlrev_b32 v7, 4, v7')
    e('buffer_load_dwordx4 %s, v7, s[48:51], s%d offen' % (vr(XR, 4), sCb))
    e('s_mov_b32 s56, 0xffff0000')
    for i in range(4): e('v_lshlrev_b32 v%d, 16, v%d\nv_and_b32 v%d, s56, v%d' % (B2 + i, XR + i, B2 + 4 + i, XR + i))
    e('s_mov_b32 s%d, s%d' % (sTile, sGrp))
    NR = 16
    fr = lambda i: vr(FR + 4 * (i % NR), 4)
    e.label('OP_job')
    e.forget()
    e('s_mul_i32 s%d, s%d, %d\ns_lshl_b32 s%d, s%d, 10\ns_add_u32 s%d, s%d, s%d\ns_add_u32 s%d, s%d, %d' % (sHo, sTile, HTILE, sT, sH0, sHo, sHo, sT, sHo, sHo, WS_H))
    e('s_lshl_b32 s%d, s%d, 17\ns_lshl_b32 s%d, s%d, 15\ns_add_u32 s%d, s%d, s%d\ns_add_u32 s%d, s%d, %d' % (sOo, sTile, sT, sWave, sOo, sOo, sT, sOo, sOo, WS_O))
    e('s_mul_i32 s%d, s%d, 20480\ns_add_u32 s%d, s%d, s%d' % (sRow, sTile, sRow, sRow, sCb))
    e('buffer_load_dwordx4 %s, v%d, s[52:55], s%d offen' % (vr(XR, 4), vXo, sRow))
    e('s_lshr_b32 s%d, s%d, 1\ns_and_b32 s%d, s%d, 1\ns_lshl_b32 s%d, s%d, 8\ns_add_u32 s%d, s%d, %d\ns_lshr_b32 s%d, s%d, 1'
      % (sT + 2, sTile, sT, sT + 2, sT, sT, sT, sT, FG1 + 48 * 4, sT + 1, sT + 2))
    e('v_min_u32 v%d, 6, v0\nv_lshlrev_b32 v%d, 2, v%d' % (vFl, vFl, vFl))
    e.label('OP_w1')
    e('buffer_load_dword v2, v%d, s[8:11], s%d offen sc1\ns_waitcnt vmcnt(0)\nv_cmp_ge_u32 vcc, s%d, v2\ns_cbranch_vccz OP_w1ok' % (vFl, sT, sT + 1))
    guard(e, fail)
    e('s_sleep 8\ns_branch OP_w1')
    e.label('OP_w1ok')

    def ld(i, so, n):
        if n % 4 == 0: e('s_add_u32 s%d, s%d, %d' % (sT + 3, so, n * 1024))
        e('buffer_load_dwordx4 %s, v%d, s[8:11], s%d offen offset:%d sc1' % (fr(i), vL16, sT + 3, (n % 4) * 1024))

    def mm(i, q, first):
        for u in range(2):
            e('v_mfma_f32_16x16x32_bf16 %s, %s, %s, %s' % (vr(ACC + 4 * u, 4), wname(wreg(q + u, NV0)), fr(i), '0' if first else vr(ACC + 4 * u, 4)))

    for n in range(14): ld(n, sHo, n)
    for n in range(13): mm(n, 64 + 2 * n, n == 0)
    e.wait(vm=0)
    e('s_cmp_ge_u32 s%d, 2\ns_cbranch_scc1 OP_h13' % sWave)
    mm(13, 64 + 26, False)
    e.label('OP_h13')
    e('s_lshl_b32 s%d, s%d, 7\ns_lshl_b32 s%d, s%d, 5\ns_add_u32 s%d, s%d, s%d\ns_add_u32 s%d, s%d, %d' % (sT, sT + 2, sT + 1, sWave, sT, sT, sT + 1, sT, sT, FO))
    e('v_and_b32 v%d, 7, v0\nv_lshlrev_b32 v%d, 2, v%d' % (vFl, vFl, vFl))
    e.label('OP_w2')
    e('buffer_load_dword v2, v%d, s[8:11], s%d offen sc1\ns_waitcnt vmcnt(0)\nv_cmp_eq_u32 vcc, 0, v2\ns_cbranch_vccz OP_w2ok' % (vFl, sT))
    guard(e, fail)
    e('s_sleep 2\ns_branch OP_w2')
    e.label('OP_w2ok')
    e.forget()
    for n in range(NR): ld(n, sOo, n)
    for n in range(32):
        mm(n, 2 * n, False)
        if n + NR < 32: ld(n, sOo, n + NR)
    e('s_lshl_b32 s%d, s%d, 11\nv_add_u32 v2, s%d, v%d' % (sT, sWave, sT, vL16))
    for u in range(2): e('ds_write_b128 v2, %s offset:%d' % (vr(ACC + 4 * u, 4), u * 1024))
    e.wait(lg=0)
    e('s_barrier\ns_cmp_lg_u32 s%d, 0\ns_cbranch_scc1 OP_next' % sWave)
    for w in range(1, 4):
        for u in range(2): e('ds_read_b128 %s, v%d offset:%d' % (vr(FR + 8 * (w - 1) + 4 * u, 4), vL16, w * 2048 + u * 1024))
    for i in range(4):
        e('v_lshlrev_b32 v2, 16, v%d\nv_and_b32 v3, s56, v%d' % (XR + i, XR + i))
        e('v_add_f32 v2, v2, v%d\nv_add_f32 v3, v3, v%d' % (B2 + i, B2 + 4 + i))
        e('v_add_f32 v%d, v%d, v2\nv_add_f32 v%d, v%d, v3' % (ACC + i, ACC + i, ACC + 4 + i, ACC + 4 + i))
    for w in range(3):
        for i in range(8): e('v_add_f32 v%d, v%d, v%d' % (ACC + i, ACC + i, FR + 8 * w + i))
    for i in range(4): e('v_cvt_pk_bf16_f32 v%d, v%d, v%d' % (FR + i, ACC + i, ACC + 4 + i))
    e('buffer_store_dwordx4 %s, v%d, s[64:67], s%d offen' % (vr(FR, 4), vXo, sRow))
    e.label('OP_next')
    e('s_barrier')
    e('s_add_u32 s%d, s%d, 3\ns_cmp_lt_u32 s%d, 128\ns_cbranch_scc1 OP_job' % (sTile, sTile, sTile))
    e('s_waitcnt vmcnt(0)\ns_branch L_end')
```

```python
import sys
from emit import *
import chain2
from chain2 import *
import workers as W

NAME = 'parallel_sum__memory_aug_recurrent_mem_tr__dense_activation_gelu__prompt'
KD = '''.section .rodata,"a"
.p2align 6
.amdhsa_kernel %s
  .amdhsa_next_free_vgpr 512
  .amdhsa_next_free_sgpr 102
  .amdhsa_accum_offset 256
  .amdhsa_group_segment_fixed_size 0
  .amdhsa_kernarg_size 120
  .amdhsa_user_sgpr_count 2
  .amdhsa_user_sgpr_kernarg_segment_ptr 1
  .amdhsa_system_sgpr_workgroup_id_x 1
.end_amdhsa_kernel
'''


def census(e, lab, fail):
    e('v_and_b32 v2, 15, v1\nv_lshlrev_b32 v2, 2, v2')
    e.label(lab)
    e('buffer_load_dword v3, v2, s[60:63], 0 offen sc1\ns_waitcnt vmcnt(0)\ns_mov_b32 s32, 0')
    for i in range(16): e('v_readlane_b32 s%d, v3, %d' % (64 + i, i))
    for i in range(16): e('s_add_u32 s32, s32, s%d' % (64 + i))
    e('s_cmp_ge_u32 s32, 256\ns_cbranch_scc1 %s_ok' % lab)
    W.guard(e, fail)
    e('s_sleep 2\ns_branch %s' % lab)
    e.label(lab + '_ok')


def ready(e, lab, fail):
    e('s_lshl_b32 s%d, s%d, 2\ns_add_u32 s%d, s%d, %d' % (sTmp, sHead, sTmp, sTmp, W.FG1))
    e('v_bfe_u32 v%d, v%d, 3, 1\nv_lshlrev_b32 v%d, 8, v%d' % (vT0, vL8, vT0, vT0))
    e.label(lab)
    e('buffer_load_dword v%d, v%d, s[8:11], s%d offen sc1\ns_waitcnt vmcnt(0)' % (vT1, vT0, sTmp))
    e('v_readlane_b32 s%d, v%d, 0\nv_readlane_b32 s%d, v%d, 1' % (sTmp + 1, vT1, sTmp + 2, vT1))
    e('s_lshl_b32 s%d, s%d, 1\ns_lshl_b32 s%d, s%d, 1\ns_add_u32 s%d, s%d, 1\ns_min_u32 s%d, s%d, s%d' % (sTmp + 1, sTmp + 1, sTmp + 2, sTmp + 2, sTmp + 2, sTmp + 2, sTmp + 1, sTmp + 1, sTmp + 2))
    e('s_cmp_ge_u32 s%d, 64\ns_cselect_b32 s%d, 0x100, s%d\ns_sub_u32 s%d, s%d, 1' % (sTmp + 1, sTmp + 1, sTmp + 1, sReady, sTmp + 1))
    e('s_cmp_gt_i32 s%d, s%d\ns_cbranch_scc1 %s_ok' % (sReady, sStep, lab))
    spin_guard(e, fail)
    e('s_sleep 4\ns_branch %s' % lab)
    e.label(lab + '_ok')


def gen(stamps=None, force_slow=False, scramble=False, **cfg):
    e = Emitter()
    e.raw('.amdgcn_target "amdgcn-amd-amdhsa--gfx950"\n.text\n.globl %s_kernel\n.p2align 8\n.type %s_kernel,@function\n%s_kernel:' % (NAME, NAME, NAME))
    e('s_cmp_ge_u32 s2, 256\ns_cbranch_scc1 L_end')
    if stamps is not None: e('s_memrealtime s[98:99]')
    e('s_load_dwordx4 s[4:7], s[0:1], 104')
    e('v_lshrrev_b32 v2, 6, v0\nv_and_b32 v1, 63, v0\nv_readfirstlane_b32 s%d, v2' % sWave)
    e('s_mov_b32 s%d, 0' % sSpin)
    e('s_waitcnt lgkmcnt(0)')
    e('s_mov_b32 s8, s6\ns_mov_b32 s9, s7\ns_mov_b32 s10, %d\ns_mov_b32 s11, 0x20000' % WS_BYTES)
    e('s_mov_b32 s60, s4\ns_mov_b32 s61, s5\ns_mov_b32 s62, 256\ns_mov_b32 s63, 0x20000')
    e('s_cmp_lg_u32 s%d, 0\ns_cbranch_scc1 L_role' % sWave)
    e('s_lshl_b32 s3, s2, 8\ns_add_u32 s3, s3, %d\nv_lshlrev_b32 v2, 2, v1\nv_mov_b32 v3, 0' % WS_FLAG)
    e('buffer_store_dword v3, v2, s[8:11], s3 offen sc1')
    e('s_getreg_b32 s33, hwreg(HW_REG_XCC_ID, 0, 4)')
    if scramble: e('s_lshr_b32 s3, s2, 5\ns_add_u32 s33, s33, s3\ns_add_u32 s33, s33, 1\ns_mul_i32 s33, s33, 3\ns_lshr_b32 s33, s33, 2\ns_and_b32 s33, s33, 15')
    e('s_lshl_b32 s3, s33, 2\nv_mov_b32 v2, s3\nv_mov_b32 v3, 1\ns_waitcnt vmcnt(0)\ns_mov_b64 exec, 1')
    e('buffer_atomic_add v3, v2, s[60:63], 0 offen sc0\ns_waitcnt vmcnt(0)\ns_mov_b64 exec, -1\nv_readfirstlane_b32 s34, v3')
    e('s_cmp_ge_u32 s33, 2\ns_cbranch_scc1 L_other\ns_cmp_ge_u32 s34, 32\ns_cbranch_scc1 L_other')
    e('s_lshl_b32 s35, s33, 5\ns_add_u32 s35, s35, s34\ns_branch L_tell')
    e.label('L_other')
    census(e, 'L_cen', 'L_fail')
    e('s_min_u32 s36, s64, 32\ns_min_u32 s37, s65, 32\ns_sub_u32 s64, s64, s36\ns_sub_u32 s65, s65, s37')
    e('s_cmp_lt_u32 s33, 2\ns_cselect_b32 s3, 32, 0\ns_sub_u32 s35, s34, s3')
    for i in range(15): e('s_cmp_gt_u32 s33, %d\ns_cselect_b32 s3, s%d, 0\ns_add_u32 s35, s35, s3' % (i, 64 + i))
    e('s_add_u32 s35, s35, s36\ns_cmp_lt_u32 s35, 32\ns_cbranch_scc1 L_tell\ns_add_u32 s35, s35, s37')
    e.label('L_tell')
    e('v_mov_b32 v2, 0\nv_mov_b32 v3, s35\nds_write_b32 v2, v3\ns_waitcnt lgkmcnt(0)')
    e.label('L_role')
    e.forget()
    e('s_barrier\nv_mov_b32 v2, 0\nds_read_b32 v3, v2\ns_waitcnt lgkmcnt(0)\nv_readfirstlane_b32 s35, v3\ns_barrier')
    e('s_cmp_lt_u32 s35, 64\ns_cbranch_scc1 L_chain')
    e('v_mov_b32 v0, v1\ns_sub_u32 s35, s35, 64\ns_lshr_b32 s36, s35, 5\ns_and_b32 s37, s35, 31')
    e('s_cmp_ge_u32 s36, 3\ns_cbranch_scc1 L_far\ns_cmp_ge_u32 s37, 20\ns_cbranch_scc1 L_rest')
    e('s_mul_i32 s%d, s36, 20\ns_add_u32 s%d, s%d, s37\ns_mov_b32 s18, s%d\ns_mov_b32 s19, 0\ns_branch L_ln' % (W.sIdx, W.sIdx, W.sIdx, W.sIdx))
    e.label('L_rest')
    e('s_mul_i32 s36, s36, 12\ns_add_u32 s36, s36, s37\ns_sub_u32 s36, s36, 20\ns_branch L_split')
    e.label('L_far')
    e('s_sub_u32 s36, s35, 60')
    e.label('L_split')
    e('s_sub_u32 s%d, s36, %d\ns_cmp_ge_u32 s36, %d\ns_cbranch_scc1 L_g1' % (W.sIdx, W.NATT, W.NATT))
    e('s_mov_b32 s%d, s36\ns_add_u32 s18, s36, 60\ns_mov_b32 s19, 1\ns_cmp_ge_u32 s18, 64\ns_cbranch_scc1 L_att' % W.sIdx)
    e.label('L_ln')
    e.forget()
    W.layernorm(e, 18)
    W.signal_counter(e, 'L_lnsig', W.DB_LN)
    e('s_cmp_eq_u32 s19, 0\ns_cbranch_scc1 L_out')
    e.label('L_att')
    e.forget()
    W.attention(e, 'L_fail')
    e.label('L_out')
    e.forget()
    W.outproj(e, 'L_fail')
    e.label('L_g1')
    e.forget()
    W.gemm1(e, 'L_fail')
    e.label('L_fail')
    e.label('L_end')
    e('s_endpgm')
    e.label('L_chain')
    e.forget()
    e('s_lshr_b32 s%d, s35, 5\ns_and_b32 s%d, s35, 31' % (sGrp, sHead))
    e('s_load_dwordx2 s[86:87], s[0:1], 8\ns_load_dwordx4 s[88:91], s[0:1], 16\ns_load_dwordx4 s[92:95], s[0:1], 32')
    ptr = dict(mem=86, q=88, k=90, v=92, o=94)
    e('s_cmp_lg_u32 s35, 0\ns_cbranch_scc1 C_nocal\ns_cmp_lg_u32 s%d, 0\ns_cbranch_scc1 C_nocal' % sWave)
    e('v_mov_b32 v2, 0\ns_mov_b64 exec, 1\ns_mov_b32 s38, 0\ns_mov_b32 s39, 0')
    for r in range(3):
        for k in range(2):
            e('s_mov_b32 s3, %d\ns_memtime s[4:5]\ns_waitcnt lgkmcnt(0)\nbuffer_store_dword v2, v2, s[8:11], s3 offen sc1\ns_waitcnt vmcnt(0)\ns_memtime s[6:7]\ns_waitcnt lgkmcnt(0)' % (WS_MR + 0x1fc000 + k * 8192))
            if r: e('s_sub_u32 s6, s6, s4\ns_add_u32 s%d, s%d, s6' % (38 + k, 38 + k))
    e('s_cmp_lt_u32 s39, s38\ns_cselect_b32 s3, 8192, 0')
    e('v_mov_b32 v3, s3\nv_mov_b32 v2, %d\nbuffer_store_dword v3, v2, s[60:63], 0 offen sc1\ns_waitcnt vmcnt(0)\ns_mov_b64 exec, -1' % W.DB_PAR)
    e.label('C_nocal')
    e('s_waitcnt lgkmcnt(0)\ns_barrier')
    e.forget()
    for w in range(1, 4): e('s_cmp_eq_u32 s%d, %d\ns_cbranch_scc1 C_set%d' % (sWave, w, w))
    for w in range(4):
        e.label('C_set%d' % w)
        e.forget()
        setup_common(e, w)
        if w < 3: e('s_branch C_pro')
    e.label('C_pro')
    e('s_nop 4')
    e.forget()
    prologue(e, ptr, cfg)
    e('s_barrier')
    e('s_cmp_lg_u32 s%d, 0\ns_cbranch_scc1 C_nosync' % sWave)
    e('v_mov_b32 v10, 1\nv_mov_b32 v11, %d\ns_mov_b64 exec, 1\nbuffer_atomic_add v10, v11, s[60:63], 0 offen\ns_mov_b64 exec, -1' % W.DB_SYNC)
    W.wait_counter(e, 'C_sync', W.DB_SYNC, 64, 'C_fail', (10, 11))
    W.wait_counter(e, 'C_kvm', W.DB_KVM, W.NATT, 'C_fail', (10, 11))
    e.label('C_nosync')
    e('s_barrier')
    e('s_mov_b32 s%d, -1' % sStep)
    ready(e, 'C_rdy', 'C_fail')
    e('s_mov_b32 s%d, 0' % sStep)
    e('s_cmp_lg_u32 s%d, 3\ns_cbranch_scc1 C_nokx' % sWave)
    kx_dma(e)
    e.label('C_nokx')
    e('s_add_u32 s%d, s%d, %d' % (sKx, sKx, 32 * 8192))
    e('s_waitcnt vmcnt(0)\ns_barrier')
    e.forget()
    e('v_lshrrev_b32 v10, 2, v%d\nv_mov_b32 v12, %d' % (vL16, W.DB_PAR))
    e('buffer_load_dword v11, v10, s[60:63], 0 offen sc1\nbuffer_load_dword v13, v12, s[60:63], 0 offen sc1\ns_waitcnt vmcnt(0)')
    e('v_readlane_b32 s32, v11, 0\nv_readlane_b32 s33, v11, 1\nv_readfirstlane_b32 s%d, v13' % sPar)
    e('s_and_b32 s%d, s%d, 8192' % (sPar, sPar))
    set_remote(e)
    c = dict(cfg)
    c['ready'] = ready
    if stamps is not None:
        e('s_memrealtime s[100:101]\ns_memtime s[6:7]\ns_waitcnt lgkmcnt(0)\ns_mov_b32 s99, s100')
        names = ['top'] + stamps.split()
        c['stamp_names'] = names
        for i in range(34): e('s_mov_b32 s%d, 0' % (64 + i))
        cnt = [0]

        def acc(e, w):
            cnt[0] += 1
            e.raw('    s_waitcnt lgkmcnt(0)')
            e.raw('    s_cmp_lt_u32 s%d, 4\n    s_cbranch_scc1 L_noacc%d' % (sStep, cnt[0]))
            for i in range(1, len(names)): e.raw('    s_sub_u32 s3, s%d, s64\n    s_add_u32 s%d, s%d, s3' % (64 + 2 * i, 84 + i, 84 + i))
            e.raw('L_noacc%d:' % cnt[0])
        if len(names) > 1: c['stamps'] = acc
    e('s_min_u32 s32, s32, s33\ns_cmp_lt_u32 s32, %d\ns_cbranch_scc1 C_slow' % (999 if force_slow else 32))
    for mode, st in (('f', ''), ('s', ' sc1')):
        if mode == 's': e.label('C_slow')
        for w in range(1, 4): e('s_cmp_eq_u32 s%d, %d\ns_cbranch_scc1 C_%s%d_in' % (sWave, w, mode, w))
        for w in range(4):
            e.label('C_%s%d_in' % (mode, w))
            e.forget()
            cc = dict(c)
            if mode == 's': cc.pop('stamps', None); cc.pop('stamp_names', None)
            loop(e, w, st, cc, 'C_%s%d' % (mode, w), 'C_exit', 'C_fail')
    e.forget()
    e.label('C_fail')
    e('s_mov_b32 s%d, 0xdead' % sStep)
    e.label('C_exit')
    if stamps is not None:
        e('s_mov_b64 exec, -1\ns_memrealtime s[100:101]\ns_memtime s[4:5]\ns_waitcnt lgkmcnt(0)')
        e('s_sub_u32 s100, s100, s99\ns_sub_u32 s99, s99, s98\ns_sub_u32 s98, s4, s6')
        e('v_mov_b32 v12, s99\nv_mov_b32 v13, s100\nv_mov_b32 v14, s%d\nv_mov_b32 v15, s95' % sStep)
        for i in range(9): e('v_mov_b32 v%d, s%d' % (16 + i, 85 + i))
        e('v_mov_b32 v25, s96\nv_mov_b32 v26, s97\nv_mov_b32 v27, s98')
        e('s_lshl_b32 s3, s%d, 8\ns_lshl_b32 s4, s17, 6\ns_add_u32 s3, s3, s4\ns_lshl_b32 s4, s23, 13\ns_add_u32 s3, s3, s4\ns_add_u32 s3, s3, %d\nv_mov_b32 v10, s3\ns_mov_b64 exec, 1' % (sHead, WS_DBG))
        for i in range(4): e('buffer_store_dwordx4 v[%d:%d], v10, s[8:11], 0 offen offset:%d' % (12 + 4 * i, 15 + 4 * i, 16 * i))
        e('s_waitcnt vmcnt(0)')
    e('s_endpgm')
    e.raw(KD % (NAME + '_kernel'))
    ref = open('cdna_kernels/%s.s.ref' % NAME).read() if cfg.get('header', True) else ''
    head = [l for l in ref.split('\n') if l.startswith(';') and '@launch' not in l]
    body = '\n'.join(l.strip() if l.startswith('    ') else l for l in e.text().split('\n'))
    return '\n'.join(head) + '\n; @launch grid=(256,1,1) block=(256,1,1) lds=163840\n' + body


DEFAULT = dict(ov=(1, 2), lov=2)
if __name__ == '__main__':
    out = sys.argv[1] if len(sys.argv) > 1 else 'cdna_kernels/%s.s' % NAME
    open(out, 'w').write(gen(**DEFAULT))
```
